```python
import torch

def _softmax(x, axis=-1):
    return torch.softmax(x, dim=axis)
def _gelu(x):
    return torch.nn.functional.gelu(x, approximate="tanh")
def _silu(x):
    return torch.nn.functional.silu(x)
def _sigmoid(x):
    return torch.sigmoid(x)
def _layernorm(x, axis=-1, eps=1e-5):
    m = x.mean(dim=axis, keepdim=True)
    v = x.var(dim=axis, keepdim=True, unbiased=False)
    return (x - m) / torch.sqrt(v + eps)
def _scatter_add(tgt, idx, src, axis=0):
    return tgt.clone().index_add_(axis, idx, src)
def _segment_sum(src, seg, n):
    out = torch.zeros((n,) + src.shape[1:], dtype=src.dtype)
    return out.index_add_(0, seg, src)
def _pad(x, pw):
    flat = tuple(v for pair in reversed(pw) for v in pair)
    return torch.nn.functional.pad(x, flat)

kernel_name = 'concat_heads__ssm_conv_h3__spectral_fnet__prompt'

def setup_inputs():

    _w = (lambda a: (lambda t: t.to(torch.bfloat16) if t.is_floating_point() else t)(torch.as_tensor(a)))
    def _A_setup():
        B, S, D = 1, 2048, 1024
        ks = 4
        return {
            "q": _w((lambda *s: torch.randn(*s, dtype=torch.bfloat16) * 0.05)(B, S, D)),
            "k": _w((lambda *s: torch.randn(*s, dtype=torch.bfloat16) * 3.2)(B, S, D)),
            "v": _w((lambda *s: torch.randn(*s, dtype=torch.bfloat16) * 3.2)(B, S, D)),
            "shift_k": _w((lambda *s: torch.randn(*s, dtype=torch.bfloat16) * 3.2)(D, ks) * 0.5),
            "ssm_k": _w((lambda *s: torch.randn(*s, dtype=torch.bfloat16) * 3.2)(D, S) * (1.0 / S ** 0.5)),
            "ssm_D": _w((lambda *s: torch.randn(*s, dtype=torch.bfloat16) * 3.2)(D)),
        }
    _A_in = _A_setup()

    def _B_setup():
        B, S, D = 1, 2048, 1024
        ns = torch.arange(S)[:, None] * torch.arange(S)[None, :]
        nd = torch.arange(D)[:, None] * torch.arange(D)[None, :]
        Ws_re = torch.cos(-2.0 * torch.pi * ns / S).to(float)
        Ws_im = torch.sin(-2.0 * torch.pi * ns / S).to(float)
        Wd_re = torch.cos(-2.0 * torch.pi * nd / D).to(float)
        Wd_im = torch.sin(-2.0 * torch.pi * nd / D).to(float)
        return {
            "x": _w((lambda *s: torch.randn(*s, dtype=torch.bfloat16) * 0.05)(B, S, D)),
            "dft_seq_re": _w(Ws_re),
            "dft_seq_im": _w(Ws_im),
            "dft_hid_re": _w(Wd_re),
            "dft_hid_im": _w(Wd_im),
        }
    _B_in = _B_setup()

    return {
        "A_q": _A_in["q"],
        "A_k": _A_in["k"],
        "A_v": _A_in["v"],
        "A_shift_k": _A_in["shift_k"],
        "A_ssm_k": _A_in["ssm_k"],
        "A_ssm_D": _A_in["ssm_D"],
        "B_x": _B_in["x"],
        "B_dft_seq_re": _B_in["dft_seq_re"],
        "B_dft_seq_im": _B_in["dft_seq_im"],
        "B_dft_hid_re": _B_in["dft_hid_re"],
        "B_dft_hid_im": _B_in["dft_hid_im"],
    }

def reference(A_q, A_k, A_v, A_shift_k, A_ssm_k, A_ssm_D, B_x, B_dft_seq_re, B_dft_seq_im, B_dft_hid_re, B_dft_hid_im):
    def _A_ref(q, k, v, shift_k, ssm_k, ssm_D):
        B, S, D = q.shape
        ks = shift_k.shape[-1]
        k_pad = _pad(k, ((0, 0), (ks - 1, 0), (0, 0)))
        k_shift = torch.zeros_like(k)
        for t in range(ks):
            k_shift = k_shift + k_pad[:, t:t + S, :] * shift_k[:, ks - 1 - t][None, None, :]
        kv = k_shift * v
        L = 2 * S
        kv_pad = _pad(kv, ((0, 0), (0, S), (0, 0)))
        kf_pad = _pad(ssm_k, ((0, 0), (0, S)))
        kv_f = (lambda x, axes=(-2,-1): torch.fft.rfft2(x.float(), dim=axes))(kv_pad[:, None, :, :], axes=(1, 2))
        kf_f = (lambda x, axes=(-2,-1): torch.fft.rfft2(x.float(), dim=axes))(kf_pad[:, None, :], axes=(1, 2))
        kf_f = (lambda x, *d: x.permute(*d))(kf_f, 1, 2, 0)
        y_f = kv_f * kf_f[None, :, :, :]
        y = (lambda x, s, axes=(-2,-1): torch.fft.irfft2(x, s=s, dim=axes).to(torch.bfloat16))(y_f, (1, L), axes=(1, 2))[:, 0, :S, :]
        y = y + kv * ssm_D[None, None, :]
        return q * y

    def _B_ref(x, dft_seq_re, dft_seq_im, dft_hid_re, dft_hid_im):
        a = torch.einsum("bsd,ed->bse", x, dft_hid_re)
        b = torch.einsum("bsd,ed->bse", x, dft_hid_im)
        y = torch.einsum("ts,bse->bte", dft_seq_re, a) - torch.einsum("ts,bse->bte", dft_seq_im, b)
        return y

    a = _A_ref(A_q, A_k, A_v, A_shift_k, A_ssm_k, A_ssm_D)
    b = _B_ref(B_x, B_dft_seq_re, B_dft_seq_im, B_dft_hid_re, B_dft_hid_im)
    return torch.concatenate([a, b], axis=-1)
```

```python
NAME = "concat_heads__ssm_conv_h3__spectral_fnet__prompt"
HEADER = """; Kernarg layout (112 bytes, ptrs only, base s[0:1]):
"""
ARG = dict(q=0, k=8, v=16, shift=24, ssmk=32, ssmD=40, x=48, sre=56, sim=64, hre=72, him=80, out=88, dbg=96, ws=104)
SIZE = dict(q=4194304, k=4194304, v=4194304, shift=8192, ssmk=4194304, ssmD=2048, x=4194304,
            sre=8388608, sim=8388608, hre=2097152, him=2097152, out=8388608, dbg=256, ws=268435456)

class Asm:
    def __init__(self):
        self.lines = []
        self.launches = []
        self.descs = []
    def __call__(self, s=""):
        for l in s.split("\n"):
            self.lines.append(l)
    def label(self, l):
        self.lines.append(l + ":")
    def kernel(self, name, grid, block, lds, vgpr, sgpr=96, accum=None, wgy=False):
        self.launches.append((name, grid, block, lds))
        if accum is None: accum = (vgpr + 3) // 4 * 4
        self.descs.append((name, vgpr, sgpr, accum, wgy))
        self(f".globl {name}\n.p2align 8\n.type {name},@function\n{name}:")
    def relaunch(self, name, grid, block, lds):
        self.launches.append((name, grid, block, lds))
    def srd(self, sreg, arg, size=None, off=0):
        self(f"    s_load_dwordx2 s[{sreg}:{sreg+1}], s[0:1], {ARG[arg]}")
        size = SIZE[arg] if size is None else size
        fin = ""
        if off:
            fin += f"    s_add_u32 s{sreg}, s{sreg}, {off}\n    s_addc_u32 s{sreg+1}, s{sreg+1}, 0\n"
        fin += f"    s_mov_b32 s{sreg+2}, {size}\n    s_mov_b32 s{sreg+3}, 0x00020000"
        return fin
    def text(self):
        out = [HEADER.rstrip("\n")]
        for (n, g, b, l) in self.launches:
            out.append(f"; @launch kernel={n} grid=({g[0]},{g[1]},{g[2]}) block=({b[0]},{b[1]},{b[2]}) lds={l}")
        out.append('.amdgcn_target "amdgcn-amd-amdhsa--gfx950"')
        out.append(".text")
        out += self.lines
        out.append('.section .rodata,"a"')
        for (n, v, s, a, wgy) in self.descs:
            out.append(".p2align 6")
            out.append(f".amdhsa_kernel {n}")
            out.append(f"  .amdhsa_next_free_vgpr {v}")
            out.append(f"  .amdhsa_next_free_sgpr {s}")
            out.append(f"  .amdhsa_accum_offset {a}")
            out.append("  .amdhsa_group_segment_fixed_size 0")
            out.append("  .amdhsa_kernarg_size 112")
            out.append("  .amdhsa_user_sgpr_count 2")
            out.append("  .amdhsa_user_sgpr_kernarg_segment_ptr 1")
            out.append("  .amdhsa_system_sgpr_workgroup_id_x 1")
            if wgy: out.append("  .amdhsa_system_sgpr_workgroup_id_y 1")
            out.append("  .amdhsa_float_denorm_mode_32 3")
            out.append(".end_amdhsa_kernel")
        return "\n".join(out) + "\n"
```

```python
import sys
from asmlib import *
a = Asm()
UT_OFF = 0
AB_OFF = 8 << 20

def rnd(v, t):
    a(f"    v_cvt_pk_bf16_f32 v{t}, v{v}, v{v}\n    v_lshlrev_b32 v{v}, 16, v{t}")

a.kernel("n1_kernel", (4096,1,1), (256,1,1), 0, 64)
a("    s_cmp_ge_u32 s2, 4096\n    s_cbranch_scc1 n1_end")
f1 = a.srd(4, "k"); f2 = a.srd(8, "v"); f3 = a.srd(12, "shift"); f4 = a.srd(16, "ws", size=8<<20)
a("    s_waitcnt lgkmcnt(0)")
a(f1); a(f2); a(f3); a(f4)
a("""    s_lshl_b32 s3, s2, 8
    v_add_u32 v1, s3, v0              ; g
    v_lshrrev_b32 v2, 9, v1           ; s
    v_and_b32 v3, 511, v1             ; dp
    v_lshlrev_b32 v4, 11, v2
    v_lshl_add_u32 v4, v3, 2, v4
    v_subrev_u32 v5, 2048, v4
    v_subrev_u32 v6, 4096, v4
    v_subrev_u32 v7, 6144, v4
    buffer_load_dword v10, v7, s[4:7], 0 offen     ; k[s-3]
    buffer_load_dword v11, v6, s[4:7], 0 offen     ; k[s-2]
    buffer_load_dword v12, v5, s[4:7], 0 offen     ; k[s-1]
    buffer_load_dword v13, v4, s[4:7], 0 offen     ; k[s]
    buffer_load_dword v14, v4, s[8:11], 0 offen    ; v[s]
    v_lshlrev_b32 v8, 4, v3
    buffer_load_dwordx4 v[16:19], v8, s[12:15], 0 offen  ; shift
    s_waitcnt vmcnt(0)""")
for ch in range(2):
    s01, s23 = 16 + 2*ch, 17 + 2*ch
    def lo(dst, src): a(f"    v_lshlrev_b32 v{dst}, 16, v{src}")
    def hi(dst, src): a(f"    v_and_b32 v{dst}, 0xffff0000, v{src}")
    ex = lo if ch == 0 else hi
    lo(20, s01); hi(21, s01); lo(22, s23); hi(23, s23)
    ex(24, 10); ex(25, 11); ex(26, 12); ex(27, 13); ex(28, 14)
    a("    v_mul_f32 v30, v24, v23"); rnd(30, 40)
    a("    v_mul_f32 v31, v25, v22"); rnd(31, 40)
    a("    v_add_f32 v30, v30, v31"); rnd(30, 40)
    a("    v_mul_f32 v31, v26, v21"); rnd(31, 40)
    a("    v_add_f32 v30, v30, v31"); rnd(30, 40)
    a("    v_mul_f32 v31, v27, v20"); rnd(31, 40)
    a("    v_add_f32 v30, v30, v31"); rnd(30, 40)
    a("    v_mul_f32 v30, v30, v28")
    a(f"    v_cvt_pk_bf16_f32 v{32+ch}, v30, v30")
a("""    ; address: (d*4096 + 2048 + s)*2, d = 2*dp
    v_lshlrev_b32 v34, 14, v3
    v_lshl_add_u32 v34, v2, 1, v34
    v_add_u32 v35, 8192, v34
    v_mov_b32 v36, 0
    buffer_store_short v36, v34, s[16:19], 0 offen
    buffer_store_short v36, v35, s[16:19], 0 offen
    v_add_u32 v34, 4096, v34
    v_add_u32 v35, 4096, v35
    buffer_store_short v32, v34, s[16:19], 0 offen
    buffer_store_short v33, v35, s[16:19], 0 offen
    s_waitcnt vmcnt(0)
n1_end:
    s_endpgm""")

a.kernel("n2_kernel", (8192,1,1), (256,1,1), 0, 64)
a("    s_cmp_ge_u32 s2, 8192\n    s_cbranch_scc1 n2_end")
f1 = a.srd(4, "ws", size=8<<20); f2 = a.srd(8, "q"); f3 = a.srd(12, "out")
a(f"    s_load_dwordx2 s[16:17], s[0:1], {ARG['ssmk']}")
a(f"    s_load_dwordx2 s[18:19], s[0:1], {ARG['ssmD']}")
a("    s_waitcnt lgkmcnt(0)")
a(f1); a(f2); a(f3)
a("""    s_lshr_b32 s20, s2, 3            ; d
    s_and_b32 s21, s2, 7             ; sb
    s_lshl_b32 s22, s20, 12
    s_add_u32 s16, s16, s22
    s_addc_u32 s17, s17, 0
    s_and_b32 s23, s20, 0xfffffffe
    s_lshl_b32 s23, s23, 1
    s_add_u32 s18, s18, s23
    s_addc_u32 s19, s19, 0
    s_load_dword s24, s[18:19], 0
    s_lshl_b32 s25, s21, 8           ; sb*256
    v_add_u32 v1, s25, v0            ; s
    s_lshl_b32 s26, s20, 13          ; d*8192 bytes
    v_lshlrev_b32 v2, 1, v1
    v_add_u32 v2, s26, v2
    v_add_u32 v2, 4096, v2
    v_subrev_u32 v3, 14, v2
    s_add_u32 s27, s25, 256
    s_mov_b32 s28, 0                 ; j
    v_mov_b32 v4, 0
n2_loop:
    s_load_dwordx4 s[32:35], s[16:17], 0
""")
for i in range(8):
    a(f"    buffer_load_ushort v{10+i}, v3, s[4:7], 0 offen offset:{14-2*i}")
a("    s_waitcnt vmcnt(0) lgkmcnt(0)")
for i in range(8):
    sr = 32 + i//2
    if i % 2 == 0: a(f"    s_lshl_b32 s36, s{sr}, 16")
    else: a(f"    s_and_b32 s36, s{sr}, 0xffff0000")
    a(f"    v_lshlrev_b32 v{10+i}, 16, v{10+i}")
    a(f"    v_fmac_f32 v4, s36, v{10+i}")
a("""    s_add_u32 s16, s16, 16
    s_addc_u32 s17, s17, 0
    v_subrev_u32 v3, 16, v3
    s_add_u32 s28, s28, 8
    s_cmp_lt_u32 s28, s27
    s_cbranch_scc1 n2_loop
    buffer_load_ushort v10, v2, s[4:7], 0 offen
    v_lshlrev_b32 v5, 11, v1
    s_lshl_b32 s29, s20, 1
    v_add_u32 v5, s29, v5            ; q offset s*2048 + d*2
    buffer_load_ushort v11, v5, s[8:11], 0 offen
    v_lshlrev_b32 v6, 12, v1
    v_add_u32 v6, s29, v6
    s_and_b32 s30, s20, 1
    s_cmp_eq_u32 s30, 0
    s_cselect_b32 s31, 16, 0
    s_lshl_b32 s24, s24, s31
    s_and_b32 s24, s24, 0xffff0000
    s_waitcnt vmcnt(0)
    v_lshlrev_b32 v10, 16, v10
    v_lshlrev_b32 v11, 16, v11""")
rnd(4, 40)
a("    v_mul_f32 v10, s24, v10"); rnd(10, 40)
a("    v_add_f32 v4, v4, v10"); rnd(4, 40)
a("""    v_mul_f32 v4, v4, v11
    v_cvt_pk_bf16_f32 v4, v4, v4
    buffer_store_short v4, v6, s[12:15], 0 offen
    s_waitcnt vmcnt(0)
n2_end:
    s_endpgm""")

a.kernel("n3_kernel", (4096,1,1), (64,1,1), 0, 64)
a("    s_cmp_ge_u32 s2, 4096\n    s_cbranch_scc1 n3_end")
f1 = a.srd(4, "hre"); f2 = a.srd(8, "him"); f3 = a.srd(12, "x"); f4 = a.srd(16, "ws", size=8<<20, off=AB_OFF)
a("    s_waitcnt lgkmcnt(0)")
a(f1); a(f2); a(f3); a(f4)
a("""    s_lshr_b32 s20, s2, 11          ; which
    s_and_b32 s21, s2, 2047
    s_lshr_b32 s22, s21, 6          ; mt (0..31)
    s_and_b32 s23, s21, 63          ; nt (0..63)
    s_cmp_eq_u32 s20, 0
    s_cselect_b32 s4, s4, s8
    s_cselect_b32 s5, s5, s9
    v_and_b32 v1, 31, v0
    v_lshrrev_b32 v2, 5, v0
    s_lshl_b32 s24, s22, 5
    s_lshl_b32 s25, s23, 5
    v_add_u32 v3, s24, v1
    v_lshlrev_b32 v3, 11, v3
    v_lshl_add_u32 v3, v2, 4, v3     ; A offset
    v_add_u32 v4, s25, v1
    v_lshlrev_b32 v4, 11, v4
    v_lshl_add_u32 v4, v2, 4, v4     ; B offset""")
for r in range(16): a(f"    v_mov_b32 v{16+r}, 0")
a("""    s_mov_b32 s26, 0
n3_loop:
    buffer_load_dwordx4 v[8:11], v3, s[4:7], s26 offen
    buffer_load_dwordx4 v[12:15], v4, s[12:15], s26 offen
    s_waitcnt vmcnt(0)
    v_mfma_f32_32x32x16_bf16 v[16:31], v[8:11], v[12:15], v[16:31]
    s_add_u32 s26, s26, 32
    s_cmp_lt_u32 s26, 2048
    s_cbranch_scc1 n3_loop
    s_nop 15
    s_nop 15
    v_lshlrev_b32 v5, 2, v2
    v_add_u32 v5, s24, v5
    v_lshlrev_b32 v5, 12, v5        ; e*4096
    v_add_u32 v6, s25, v1
    v_lshl_add_u32 v5, v6, 1, v5
    s_lshl_b32 s27, s20, 22
    v_add_u32 v5, s27, v5""")
for r in range(16):
    row = (r & 3) + 8 * (r >> 2)
    a(f"    v_cvt_pk_bf16_f32 v32, v{16+r}, v{16+r}")
    a(f"    v_add_u32 v33, {row*4096}, v5")
    a(f"    buffer_store_short v32, v33, s[16:19], 0 offen")
    a(f"    s_nop 1")
a("""    s_waitcnt vmcnt(0)
n3_end:
    s_endpgm""")

a.kernel("n4_kernel", (2048,1,1), (64,1,1), 0, 96)
a("    s_cmp_ge_u32 s2, 2048\n    s_cbranch_scc1 n4_end")
f1 = a.srd(4, "sre"); f2 = a.srd(8, "sim"); f3 = a.srd(12, "ws", size=8<<20, off=AB_OFF); f4 = a.srd(16, "out")
a("    s_waitcnt lgkmcnt(0)")
a(f1); a(f2); a(f3); a(f4)
a("""    s_lshr_b32 s22, s2, 5          ; mt (0..63)  t
    s_and_b32 s23, s2, 31          ; nt (0..31)  e
    v_and_b32 v1, 31, v0
    v_lshrrev_b32 v2, 5, v0
    s_lshl_b32 s24, s22, 5
    s_lshl_b32 s25, s23, 5
    v_add_u32 v3, s24, v1
    v_lshlrev_b32 v3, 12, v3
    v_lshl_add_u32 v3, v2, 4, v3     ; A offset
    v_add_u32 v4, s25, v1
    v_lshlrev_b32 v4, 12, v4
    v_lshl_add_u32 v4, v2, 4, v4
    v_add_u32 v7, 0x400000, v4       ; bT""")
for r in range(32): a(f"    v_mov_b32 v{32+r}, 0")
a("""    s_mov_b32 s26, 0
n4_loop:
    buffer_load_dwordx4 v[8:11], v3, s[4:7], s26 offen
    buffer_load_dwordx4 v[12:15], v4, s[12:15], s26 offen
    buffer_load_dwordx4 v[16:19], v3, s[8:11], s26 offen
    buffer_load_dwordx4 v[20:23], v7, s[12:15], s26 offen
    s_waitcnt vmcnt(0)
    v_mfma_f32_32x32x16_bf16 v[32:47], v[8:11], v[12:15], v[32:47]
    v_mfma_f32_32x32x16_bf16 v[48:63], v[16:19], v[20:23], v[48:63]
    s_add_u32 s26, s26, 32
    s_cmp_lt_u32 s26, 4096
    s_cbranch_scc1 n4_loop
    s_nop 15
    s_nop 15
    v_lshlrev_b32 v5, 2, v2
    v_add_u32 v5, s24, v5
    v_lshlrev_b32 v5, 12, v5        ; t*4096
    v_add_u32 v6, s25, v1
    v_lshl_add_u32 v5, v6, 1, v5
    v_add_u32 v5, 2048, v5""")
for r in range(16):
    row = (r & 3) + 8 * (r >> 2)
    rnd(32+r, 70); rnd(48+r, 70)
    a(f"    v_sub_f32 v71, v{32+r}, v{48+r}")
    a(f"    v_cvt_pk_bf16_f32 v72, v71, v71")
    a(f"    v_add_u32 v73, {row*4096}, v5")
    a(f"    buffer_store_short v72, v73, s[16:19], 0 offen")
    a(f"    s_nop 1")
a("""    s_waitcnt vmcnt(0)
n4_end:
    s_endpgm""")

nd = int(sys.argv[2]) if len(sys.argv) > 2 else 0
if nd:
    a.kernel("nop_kernel", (256,1,1), (256,1,1), 0, 8)
    a("    s_endpgm")
    for i in range(nd-1): a.relaunch("nop_kernel", (256,1,1), (256,1,1), 0)
open(sys.argv[1], "w").write(a.text())
```

```python
import asmlint
NAME = "concat_heads__ssm_conv_h3__spectral_fnet__prompt"
HEADER = """; Kernarg layout (112 bytes, ptrs only, base s[0:1]):
"""
ARG = dict(q=0, k=8, v=16, shift=24, ssmk=32, ssmD=40, x=48, sre=56, sim=64, hre=72, him=80, out=88, dbg=96, ws=104)
SIZE = dict(q=4194304, k=4194304, v=4194304, shift=8192, ssmk=4194304, ssmD=2048, x=4194304,
            sre=8388608, sim=8388608, hre=2097152, him=2097152, out=8388608, dbg=256, ws=268435456)

class Asm:
    def __init__(self):
        self.kernels = []
        self.launches = []
        self.descs = []
        self.cur = None
    def __call__(self, s=""):
        for l in s.split("\n"):
            self.cur.append(l)
    def label(self, l):
        self.cur.append(l + ":")
    def kernel(self, name, grid, block, lds, vgpr, sgpr=96, accum=None, launch=True):
        if launch: self.launches.append((name, grid, block, lds))
        if accum is None: accum = min(256, (vgpr + 3) // 4 * 4)
        self.descs.append((name, vgpr, sgpr, accum))
        self.cur = []
        self.kernels.append((name, self.cur))
    def relaunch(self, name, grid, block, lds):
        self.launches.append((name, grid, block, lds))
    def ptr(self, sreg, arg):
        self(f"    s_load_dwordx2 s[{sreg}:{sreg+1}], s[0:1], {ARG[arg]}")
    def srd_fin(self, sreg, size, off=0):
        if off:
            self(f"    s_add_u32 s{sreg}, s{sreg}, {off}\n    s_addc_u32 s{sreg+1}, s{sreg+1}, 0")
        self(f"    s_mov_b32 s{sreg+2}, {size}\n    s_mov_b32 s{sreg+3}, 0x00020000")
    def srds(self, specs):
        for (r, arg, size, off) in specs: self.ptr(r, arg)
        self("    s_waitcnt lgkmcnt(0)")
        for (r, arg, size, off) in specs: self.srd_fin(r, SIZE[arg] if size is None else size, off)
    TS = False
    TS_OFF = 16 << 20
    def ts_init(self, kidx):
        if not self.TS: return
        self.ts_k = kidx
        self("    s_memrealtime s[86:87]")
        self(f"    s_load_dwordx2 s[84:85], s[0:1], {ARG['ws']}")
        self("    s_mov_b32 s94, s2")
        self("    s_waitcnt lgkmcnt(0)")
        self("    s_mov_b32 s88, s86")
    def ts(self, i):
        if not self.TS: return
        self("    s_memrealtime s[86:87]")
        self("    s_waitcnt lgkmcnt(0)")
        self(f"    s_mov_b32 s{88+i}, s86")
    def ts_flush(self):
        if not self.TS: return
        self(f"""    s_waitcnt vmcnt(0) lgkmcnt(0)
    s_memrealtime s[86:87]
    s_waitcnt lgkmcnt(0)
    s_mov_b32 s92, s86
    s_add_u32 s84, s84, {self.TS_OFF + self.ts_k * 4096 * 32}
    s_addc_u32 s85, s85, 0
    s_mov_b32 s86, 0x400000
    s_mov_b32 s87, 0x20000
    v_mov_b32 v200, s88
    v_mov_b32 v201, s89
    v_mov_b32 v202, s90
    v_mov_b32 v203, s91
    v_mov_b32 v204, s92
    s_getreg_b32 s93, hwreg(HW_REG_XCC_ID)
    v_mov_b32 v205, s93
    s_getreg_b32 s93, hwreg(HW_REG_HW_ID)
    v_mov_b32 v206, s93
    v_mov_b32 v207, 0
    v_mbcnt_lo_u32_b32 v208, -1, 0
    v_mbcnt_hi_u32_b32 v208, -1, v208
    v_cmp_eq_u32 vcc, 0, v208
    s_and_saveexec_b64 s[82:83], vcc
    v_readfirstlane_b32 s93, v255
    s_lshl_b32 s94, s94, 3
    s_add_u32 s94, s94, s93
    s_lshl_b32 s94, s94, 5
    v_mov_b32 v209, s94
    s_nop 4
    buffer_store_dwordx4 v[200:203], v209, s[84:87], 0 offen
    buffer_store_dwordx4 v[204:207], v209, s[84:87], 0 offen offset:16
    s_waitcnt vmcnt(0)
    s_mov_b64 exec, s[82:83]""")
    def text(self, lint=True):
        out = [HEADER.rstrip("\n")]
        for (n, g, b, l) in self.launches:
            out.append(f"; @launch kernel={n} grid=({g[0]},{g[1]},{g[2]}) block=({b[0]},{b[1]},{b[2]}) lds={l}")
        out.append('.amdgcn_target "amdgcn-amd-amdhsa--gfx950"')
        out.append(".text")
        for (name, lines) in self.kernels:
            if lint:
                lines2, npad = asmlint.pad(lines)
                errs = asmlint.check_waits(lines2, name)
                for e in errs[:20]: print("WAITERR", e)
                if npad: print(f"{name}: {npad} auto pads")
            else:
                lines2 = lines
            out.append(f".globl {name}\n.p2align 8\n.type {name},@function\n{name}:")
            out += lines2
        out.append('.section .rodata,"a"')
        for (n, v, s, a) in self.descs:
            out.append(".p2align 6")
            out.append(f".amdhsa_kernel {n}")
            out.append(f"  .amdhsa_next_free_vgpr {v}")
            out.append(f"  .amdhsa_next_free_sgpr {s}")
            out.append(f"  .amdhsa_accum_offset {a}")
            out.append("  .amdhsa_group_segment_fixed_size 0")
            out.append("  .amdhsa_kernarg_size 112")
            out.append("  .amdhsa_user_sgpr_count 2")
            out.append("  .amdhsa_user_sgpr_kernarg_segment_ptr 1")
            out.append("  .amdhsa_system_sgpr_workgroup_id_x 1")
            out.append("  .amdhsa_float_denorm_mode_32 3")
            out.append(".end_amdhsa_kernel")
        return "\n".join(out) + "\n"

def vr(b, n): return f"v[{b}:{b+n-1}]" if n > 1 else f"v{b}"
def sr(b, n): return f"s[{b}:{b+n-1}]" if n > 1 else f"s{b}"
```

```python
import re

REG_RE = re.compile(r'^(-?|\|)?([vas])(?:\[(\d+):(\d+)\]|(\d+))\|?$')

def parse_reg(tok):
    tok = tok.strip()
    neg = tok
    if tok.startswith("abs(") and tok.endswith(")"): tok = tok[4:-1]
    if tok.startswith("-"): tok = tok[1:]
    if tok.startswith("|") and tok.endswith("|"): tok = tok[1:-1]
    m = re.match(r'^([vas])\[(\d+):(\d+)\]$', tok)
    if m: return [(m.group(1), i) for i in range(int(m.group(2)), int(m.group(3)) + 1)]
    m = re.match(r'^([vas])(\d+)$', tok)
    if m: return [(m.group(1), int(m.group(2)))]
    if tok == "vcc": return [("s", "vcc")]
    if tok in ("vcc_lo", "vcc_hi"): return [("s", "vcc")]
    if tok == "exec": return [("s", "exec")]
    if tok == "m0": return [("s", "m0")]
    if tok == "scc": return [("s", "scc")]
    return []

TRANS = ("v_exp_", "v_log_", "v_rcp_", "v_rsq_", "v_sqrt_", "v_sin_", "v_cos_")

class Ins:
    def __init__(self, text):
        self.text = text
        t = text.split(";")[0].strip()
        self.is_label = t.endswith(":")
        self.is_dir = t.startswith(".")
        self.empty = (t == "")
        self.op = ""
        self.reads = set(); self.writes = set()
        self.kind = "none"
        if self.is_label or self.is_dir or self.empty: return
        parts = t.split(None, 1)
        self.op = parts[0]
        rest = parts[1] if len(parts) > 1 else ""
        rest2 = re.sub(r'quad_perm:\[[^\]]*\]', 'quad_perm', rest)
        rest2 = re.sub(r'op_sel(_hi)?:\[[^\]]*\]', 'opsel', rest2)
        rest2 = re.sub(r'neg_(lo|hi):\[[^\]]*\]', 'neg', rest2)
        rest2 = re.sub(r'hwreg\([^)]*\)', 'hwreg', rest2)
        ops = [o.strip() for o in rest2.split(",")] if rest2 else []
        mods = []
        if ops:
            lp = ops[-1].split()
            if lp:
                ops[-1] = lp[0]; mods = lp[1:]
        self.ops = ops; self.mods = mods
        op = self.op
        R = lambda i: parse_reg(ops[i]) if i < len(ops) else []
        self.dpp = ("_dpp" in op) or any(m.startswith(("row_", "wave_", "quad_perm")) for m in mods)
        self.sdwa = "_sdwa" in op
        if op.startswith("v_mfma") or op.startswith("v_smfmac"):
            self.kind = "mfma"
            self.passes = 8 if "32x32" in op else 4
            if "f32_32x32x2_f32" in op or "32x32x2f32" in op: self.passes = 16
            if "16x16x4_f32" in op: self.passes = 8
            self.writes = set(R(0)); self.srcA = set(R(1)); self.srcB = set(R(2)); self.srcC = set(R(3))
            self.dlist = R(0); self.clist = R(3)
            self.reads = self.srcA | self.srcB | self.srcC
        elif op.startswith("v_"):
            self.kind = "valu"
            self.trans = op.startswith(TRANS)
            if op.startswith("v_cmp"):
                self.writes = set(R(0))
                if op.startswith("v_cmpx"): self.writes.add(("s", "exec"))
                for i in range(1, len(ops)): self.reads |= set(R(i))
            elif op.startswith("v_permlane") and "swap" in op:
                self.writes = set(R(0)) | set(R(1)); self.reads = set(self.writes); self.perm = True
            elif op.startswith(("v_add_co", "v_sub_co", "v_subrev_co", "v_addc_co", "v_subb_co", "v_div_scale", "v_mad_u64_u32")):
                self.writes = set(R(0)) | set(R(1))
                for i in range(2, len(ops)): self.reads |= set(R(i))
            else:
                self.writes = set(R(0))
                for i in range(1, len(ops)): self.reads |= set(R(i))
                if op.startswith(("v_fmac", "v_pk_fmac", "v_dot2c", "v_writelane")) or self.dpp or self.sdwa or "d16" in op:
                    self.reads |= set(R(0))
                if op.startswith("v_cndmask") and len(ops) == 3: self.reads.add(("s", "vcc"))
        elif op.startswith("ds_"):
            self.kind = "ds"
            if op.startswith(("ds_read", "ds_bpermute", "ds_permute", "ds_swizzle")) or "_rtn" in op:
                self.writes = set(R(0))
                for i in range(1, len(ops)): self.reads |= set(R(i))
                if "d16" in op: self.reads |= set(R(0))
                self.dsload = True
            else:
                for i in range(0, len(ops)): self.reads |= set(R(i))
        elif op.startswith(("buffer_", "global_", "flat_")):
            self.kind = "vmem"
            self.lds = ("lds" in mods) or ("_lds_" in op)
            if op in ("buffer_inv", "buffer_wbl2"):
                pass
            elif "load" in op and not self.lds:
                self.writes = set(R(0))
                for i in range(1, len(ops)): self.reads |= set(R(i))
                if "d16" in op: self.reads |= set(R(0))
            elif "atomic" in op and ("sc0" in mods):
                self.writes = set(R(0)) if op.startswith("buffer") else set(R(0))
                for i in range(0, len(ops)): self.reads |= set(R(i))
            else:
                for i in range(0, len(ops)): self.reads |= set(R(i))
                if self.lds: self.reads.add(("s", "m0"))
            self.store = ("store" in op)
            self.storedata = set()
            if self.store and ("x3" in op or "x4" in op):
                self.storedata = set(R(0)) if op.startswith("buffer") else set(R(1))
        elif op.startswith("s_"):
            self.kind = "salu"
            if op in ("s_nop", "s_waitcnt", "s_barrier", "s_endpgm", "s_sleep", "s_setprio", "s_branch") or op.startswith("s_cbranch"):
                self.kind = "ctl"
                if op in ("s_cbranch_vccz", "s_cbranch_vccnz"): self.reads.add(("s", "vcc"))
                if op in ("s_cbranch_execz", "s_cbranch_execnz"): self.reads.add(("s", "exec"))
            elif op.startswith("s_cmp") or op.startswith("s_bitcmp"):
                for i in range(0, len(ops)): self.reads |= set(R(i))
            elif op.startswith(("s_load", "s_buffer_load", "s_memtime", "s_memrealtime")):
                self.kind = "smem"
                self.writes = set(R(0))
                for i in range(1, len(ops)): self.reads |= set(R(i))
            else:
                self.writes = set(R(0))
                for i in range(1, len(ops)): self.reads |= set(R(i))
                if "saveexec" in op: self.writes.add(("s", "exec")); self.reads.add(("s", "exec"))
    def states(self):
        if self.kind == "none": return 0
        if self.op == "s_nop": return int(self.ops[0], 0) + 1
        return 1

def isv(r): return r[0] in ("v", "a")

def required(prev, cur):
    need = 0
    W = prev.writes
    if prev.kind == "valu":
        vw = {r for r in W if isv(r)}
        sw = {r for r in W if not isv(r)}
        if cur.kind == "mfma" and (vw & cur.reads): need = max(need, 2)
        if cur.kind == "mfma" and ("s", "exec") in sw: need = max(need, 4)
        if cur.kind == "valu":
            if getattr(cur, "dpp", False) and (vw & cur.reads): need = max(need, 2)
            if getattr(cur, "dpp", False) and ("s", "exec") in sw: need = max(need, 5)
            if getattr(cur, "perm", False) and (vw & cur.reads): need = max(need, 2)
            if cur.op.startswith(("v_readlane", "v_readfirstlane")) and (vw & cur.reads): need = max(need, 1)
            if getattr(prev, "trans", False) and not getattr(cur, "trans", False) and (vw & cur.reads): need = max(need, 1)
            if (prev.sdwa or "op_sel" in prev.text) and (vw & (cur.reads | cur.writes)): need = max(need, 1)
            if sw & cur.reads: need = max(need, 2)
            if cur.op.startswith(("v_readlane", "v_writelane")) and (sw & cur.reads): need = max(need, 4)
            if ("s", "exec") in sw and prev.op.startswith("v_cmpx") and cur.op.startswith(("v_readlane", "v_readfirstlane", "v_writelane", "v_permlane")): need = max(need, 4)
        if cur.kind == "vmem" and (sw & cur.reads): need = max(need, 5)
        if cur.kind in ("salu", "ctl", "smem") and (sw & cur.reads): need = max(need, 4)
        if getattr(prev, "trans", False) and cur.kind in ("mfma",) and (vw & cur.reads): need = max(need, 2)
    if prev.kind == "salu":
        if ("s", "m0") in W and ((cur.kind == "vmem" and getattr(cur, "lds", False)) or (cur.kind == "ds" and "addtid" in cur.op)): need = max(need, 1)
    if prev.kind == "mfma":
        p = prev.passes
        big = {2: 5, 4: 8, 8: 12, 16: 20}[p]
        if cur.kind == "mfma":
            if W & (cur.srcA | cur.srcB): need = max(need, big)
            if W & cur.srcC:
                if cur.clist == prev.dlist and cur.passes == p: need = max(need, 0)
                else: need = max(need, {2: 4, 4: 6, 8: 10, 16: 18}[p])
            if (W & cur.writes) and not (cur.dlist == prev.dlist and cur.passes == p): need = max(need, big)
        elif cur.kind in ("valu", "vmem", "ds"):
            if W & (cur.reads | cur.writes): need = max(need, big)
        if cur.kind == "valu" and (prev.srcC & cur.writes): need = max(need, {2: 1, 4: 3, 8: 7, 16: 15}[p])
        if cur.kind in ("ds", "vmem") and (prev.srcC & cur.writes): need = max(need, {2: 1, 4: 3, 8: 7, 16: 15}[p])
    if prev.kind == "vmem" and getattr(prev, "storedata", None):
        if prev.storedata & cur.writes: need = max(need, 2 if cur.kind == "valu" else 1)
    return need

def pad(lines, verbose=False, window=24):
    out = []
    hist = []
    npad = 0
    for ln in lines:
        ins = Ins(ln)
        if ins.kind == "none":
            out.append(ln); continue
        dist = 0; need_extra = 0
        for prev in reversed(hist[-window:]):
            req = required(prev, ins)
            if req > dist: need_extra = max(need_extra, req - dist)
            dist += prev.states()
            if dist >= 24: break
        while need_extra > 0:
            n = min(need_extra, 16)
            nop = f"    s_nop {n-1}"
            out.append(nop + "    ; auto-pad"); hist.append(Ins(nop)); need_extra -= n; npad += 1
        out.append(ln); hist.append(ins)
        if ins.op in ("s_endpgm", "s_branch"): hist = []
    return out, npad

def check_waits(lines, name=""):
    vm = []
    lg = []
    errs = []
    for idx, ln in enumerate(lines):
        ins = Ins(ln)
        if ins.kind == "none": continue
        if ins.op == "s_waitcnt":
            t = ln.split(";")[0]
            m = re.search(r'vmcnt\((\d+)\)', t)
            if m:
                n = int(m.group(1)); vm = vm[len(vm) - n:] if n < len(vm) and n > 0 else ([] if n == 0 else vm)
            m = re.search(r'lgkmcnt\((\d+)\)', t)
            if m:
                n = int(m.group(1))
                if any(k == "smem" for (_, _, k) in lg):
                    if n == 0: lg = []
                else:
                    lg = lg[len(lg) - n:] if n < len(lg) and n > 0 else ([] if n == 0 else lg)
            continue
        if ins.op in ("s_endpgm",): vm = []; lg = []; continue
        touched = ins.reads | ins.writes
        for (d, tx) in vm:
            if d & touched: errs.append(f"{name} line {idx}: '{ln.strip()}' touches pending vmem dst of '{tx.strip()}'")
        for (d, tx, k) in lg:
            if d & touched:
                if ins.kind == "ds" and k == "ds" and not (d & ins.reads): continue
                errs.append(f"{name} line {idx}: '{ln.strip()}' touches pending lgkm dst of '{tx.strip()}'")
        if ins.kind == "vmem":
            vm.append((set(ins.writes), ln))
            if len(vm) > 63: errs.append(f"{name} line {idx}: more than 63 vmem outstanding")
        elif ins.kind == "ds":
            lg.append((set(ins.writes), ln, "ds"))
        elif ins.kind == "smem":
            lg.append((set(ins.writes), ln, "smem"))
    return errs
```

```python
import sys
from asmlib import *

UT_OFF = 0
G1_OFF = 4 << 20
Y2_OFF = 8 << 20
MB4 = 4 << 20

def emit_a1(a, wg="s2"):
    a.srds([(4, "k", None, 0), (8, "v", None, 0), (12, "shift", None, 0), (16, "ws", MB4, UT_OFF)])
    a(f"""    s_lshr_b32 s20, {wg}, 4
    s_lshl_b32 s20, s20, 7              ; rt*128
    s_and_b32 s21, {wg}, 15
    s_lshl_b32 s21, s21, 6              ; ct*64
    v_lshrrev_b32 v1, 4, v0
    v_and_b32 v2, 15, v0
    v_lshl_add_u32 v3, v1, 3, s20       ; row0
    v_lshl_add_u32 v4, v2, 2, s21       ; ch0
    v_lshlrev_b32 v5, 11, v3
    v_lshl_add_u32 v5, v4, 1, v5
    v_subrev_u32 v6, 6144, v5
    v_subrev_u32 v7, 4096, v5
    v_subrev_u32 v8, 2048, v5
    v_add_u32 v9, 4096, v5
    v_add_u32 v10, 8192, v5
    v_add_u32 v11, 12288, v5
    v_lshlrev_b32 v12, 3, v4""")
    KR = 20
    VR = 42
    SR = 60
    a(f"    buffer_load_dwordx4 {vr(SR,4)}, v12, s[12:15], 0 offen")
    a(f"    buffer_load_dwordx4 {vr(SR+4,4)}, v12, s[12:15], 0 offen offset:16")
    for i, ad in enumerate((6, 7, 8)):
        a(f"    buffer_load_dwordx2 {vr(KR+2*i,2)}, v{ad}, s[4:7], 0 offen")
    addr = [5, 9, 10, 11]
    for r in range(8):
        off = " offset:2048" if r & 1 else ""
        a(f"    buffer_load_dwordx2 {vr(KR+6+2*r,2)}, v{addr[r>>1]}, s[4:7], 0 offen{off}")
    for r in range(8):
        off = " offset:2048" if r & 1 else ""
        a(f"    buffer_load_dwordx2 {vr(VR+2*r,2)}, v{addr[r>>1]}, s[8:11], 0 offen{off}")
    SK = 70
    KF = 88
    a("    s_mov_b32 s22, 0xffff0000")
    a.ts(1)
    a("    s_waitcnt vmcnt(19)")
    for p in range(2):
        for e in range(2):
            c = 2 * p + e
            d0, d1 = SR + 2 * c, SR + 2 * c + 1
            a(f"    v_lshlrev_b32 v{SK+0+2*p+e}, 16, v{d0}")
            a(f"    v_and_b32 v{SK+4+2*p+e}, s22, v{d0}")
            a(f"    v_lshlrev_b32 v{SK+8+2*p+e}, 16, v{d1}")
            a(f"    v_and_b32 v{SK+12+2*p+e}, s22, v{d1}")
    def unpack(dst, src):
        for p in range(2):
            a(f"    v_lshlrev_b32 v{dst+2*p}, 16, v{src+p}")
            a(f"    v_and_b32 v{dst+2*p+1}, s22, v{src+p}")
    for r in range(11):
        a(f"    s_waitcnt vmcnt({18 - r})")
        unpack(KF + 4 * r, KR + 2 * r)
    VF = 132
    for r in range(8):
        a(f"    s_waitcnt vmcnt({7 - r})")
        vf = VF + 4 * (r & 1)
        unpack(vf, VR + 2 * r)
        for p in range(2):
            t = KF + 4 * r + 2 * p
            kk = lambda rr: vr(KF + 4 * rr + 2 * p, 2)
            sk = lambda j: vr(SK + 4 * j + 2 * p, 2)
            a(f"    v_pk_mul_f32 {vr(t,2)}, {kk(r)}, {sk(3)}")
            a(f"    v_pk_fma_f32 {vr(t,2)}, {kk(r+1)}, {sk(2)}, {vr(t,2)}")
            a(f"    v_pk_fma_f32 {vr(t,2)}, {kk(r+2)}, {sk(1)}, {vr(t,2)}")
            a(f"    v_pk_fma_f32 {vr(t,2)}, {kk(r+3)}, {sk(0)}, {vr(t,2)}")
            a(f"    v_pk_mul_f32 {vr(t,2)}, {vr(t,2)}, {vr(vf+2*p,2)}")
    a.ts(2)
    OUT = 20
    a("""    v_lshlrev_b32 v13, 12, v4
    v_lshl_add_u32 v13, v3, 1, v13
    s_mov_b32 s23, 4096
    s_mov_b32 s24, 8192
    s_mov_b32 s25, 12288""")
    soff = ["0", "s23", "s24", "s25"]
    for c in range(4):
        p, e = c >> 1, c & 1
        for j in range(4):
            u0 = KF + 4 * (2 * j) + 2 * p + e
            u1 = KF + 4 * (2 * j + 1) + 2 * p + e
            a(f"    v_cvt_pk_bf16_f32 v{OUT+4*c+j}, v{u0}, v{u1}")
        a(f"    buffer_store_dwordx4 {vr(OUT+4*c,4)}, v13, s[16:19], {soff[c]} offen")
    a.ts(3)
    a.ts_flush()
    a("    s_endpgm")

def emit_b1(a, wg="s2"):
    a.srds([(4, "x", None, 0), (8, "ws", MB4, G1_OFF)])
    a(f"""    s_and_b32 s20, {wg}, 7               ; g
    s_lshr_b32 s21, {wg}, 3              ; ct
    v_lshrrev_b32 v1, 6, v0
    v_and_b32 v2, 63, v0                 ; lane
    s_nop 0
    v_readfirstlane_b32 s22, v1          ; w
    s_lshl_b32 s23, s20, 2
    s_add_u32 s23, s23, s22              ; s1 = 4g + w
    s_lshl_b32 s24, s22, 12
    v_lshrrev_b32 v3, 2, v2              ; lane>>2  (0..15)
    v_and_b32 v4, 3, v2
    v_lshrrev_b32 v5, 5, v2
    v_lshlrev_b32 v5, 1, v5
    v_xor_b32 v4, v4, v5                 ; chunk
    v_lshlrev_b32 v6, 16, v3
    v_lshl_add_u32 v6, v4, 4, v6         ; + chunk*16
    s_lshl_b32 s25, s23, 11              ; s1*2048
    s_lshl_b32 s26, s21, 6               ; ct*64
    s_add_u32 s25, s25, s26
    v_add_u32 v6, s25, v6""")
    for i in range(4):
        a(f"    s_add_u32 m0, s24, {1024*i}")
        if i: a(f"    s_mov_b32 s27, {i << 20}")
        else: a("    s_nop 0")
        a(f"    buffer_load_dwordx4 v6, s[4:7], {'s27' if i else '0'} offen lds")
    a("""    v_and_b32 v7, 15, v2                 ; m
    v_lshrrev_b32 v8, 4, v2              ; h
    v_lshrrev_b32 v9, 1, v7              ; m>>1
    v_and_b32 v10, 1, v7                 ; part
    v_lshlrev_b32 v11, 8, v8             ; 256 h
    v_add_u32 v11, s23, v11              ; s1 + 256h
    v_cvt_f32_u32 v11, v11
    v_mul_f32 v11, 0x3a000000, v11       ; /2048
    v_cvt_f32_u32 v12, v10
    v_mul_f32 v12, 0.25, v12             ; phase = part/4 -> 0x3e800000""".replace("v_mul_f32 v12, 0.25, v12", "v_mul_f32 v12, 0x3e800000, v12"))
    AF = 32
    for mt in range(4):
        a(f"    v_add_u32 v13, {8*mt}, v9")
        a("    v_cvt_f32_u32 v13, v13")
        a("    v_mov_b32 v14, v12")
        if mt == 0:
            a("""    v_cmp_eq_u32 vcc, 1, v7
    v_mov_b32 v15, 0x42000000
    v_cndmask_b32 v13, v13, v15, vcc
    v_cvt_f32_u32 v15, s23
    v_mul_f32 v15, 0xbc800000, v15       ; -s1/64
    v_cndmask_b32 v14, v14, v15, vcc""")
        a("""    v_fma_f32 v16, v13, v11, v14         ; a0
    v_mul_f32 v17, 0x3c800000, v13""")
        for ks in range(2):
            for i in range(8):
                n = 32 * ks + i
                t = 20 + i
                if n == 0: a(f"    v_mov_b32 v{t}, v16")
                else:
                    a(f"    v_mov_b32 v18, {hex(f2u(float(n)))}")
                    a(f"    v_fma_f32 v{t}, v18, v17, v16")
            for i in range(8): a(f"    v_cos_f32 v{20+i}, v{20+i}")
            for j in range(4):
                a(f"    v_cvt_pk_bf16_f32 v{AF + 8*mt + 4*ks + j}, v{20+2*j}, v{21+2*j}")
    a("""    v_lshrrev_b32 v18, 2, v7             ; r = m>>2
    v_and_b32 v19, 3, v7                 ; cc
    v_lshl_add_u32 v18, v8, 3, v18       ; 8h + r
    v_lshlrev_b32 v18, 6, v18            ; *64
    v_lshl_add_u32 v18, v19, 3, v18      ; + 8cc
    v_add_u32 v18, s24, v18
    v_and_b32 v19, 1, v8
    v_lshlrev_b32 v19, 5, v19            ; 32*(h&1)
    v_add_u32 v28, v18, v19              ; nt=0
    v_xor_b32 v19, 32, v19
    v_add_u32 v29, v18, v19              ; nt=1""")
    a.ts(1)
    a("    s_waitcnt vmcnt(0)")
    a.ts(2)
    BF = 64
    for nt in range(2):
        for ks in range(2):
            for j in range(2):
                d = BF + 8 * nt + 4 * ks + 2 * j
                a(f"    ds_read_b64_tr_b16 {vr(d,2)}, v{28+nt} offset:{2048*ks + 256*j}")
    AC = 80
    a("    s_waitcnt lgkmcnt(0)")
    for ks in range(2):
        for mt in range(4):
            for nt in range(2):
                d = AC + 8 * mt + 4 * nt
                c = "0" if ks == 0 else vr(d, 4)
                a(f"    v_mfma_f32_16x16x32_bf16 {vr(d,4)}, {vr(AF+8*mt+4*ks,4)}, {vr(BF+8*nt+4*ks,4)}, {c}")
    a("""    v_lshlrev_b32 v18, 6, v8             ; 2h*32 = 64h
    v_add_u32 v18, v18, v7               ; + n
    v_lshlrev_b32 v18, 4, v18            ; *16
    s_lshl_b32 s27, s22, 2
    s_add_u32 s27, s27, 16384
    v_add_u32 v18, s27, v18""")
    for mt in range(4):
        for nt in range(2):
            d = AC + 8 * mt + 4 * nt
            a(f"    v_cvt_pk_bf16_f32 v20, v{d}, v{d+1}")
            a(f"    v_cvt_pk_bf16_f32 v21, v{d+2}, v{d+3}")
            a(f"    ds_write_b32 v18, v20 offset:{4096*mt + 256*nt}")
            a(f"    ds_write_b32 v18, v21 offset:{4096*mt + 256*nt + 512}")
    a("""    s_waitcnt lgkmcnt(0)
    s_barrier
    v_lshlrev_b32 v18, 4, v0
    v_add_u32 v18, 16384, v18""")
    for j in range(4):
        a(f"    ds_read_b128 {vr(32+4*j,4)}, v18 offset:{4096*j}")
    a("""    v_lshrrev_b32 v19, 5, v0
    v_lshlrev_b32 v19, 17, v19           ; *131072
    v_and_b32 v20, 31, v0
    v_lshl_add_u32 v19, v20, 4, v19
    s_lshl_b32 s25, s20, 14              ; g*16384
    s_lshl_b32 s26, s21, 9               ; ct*512
    s_add_u32 s25, s25, s26
    v_add_u32 v19, s25, v19""")
    for j in range(4):
        a(f"    s_mov_b32 s27, {j << 20}")
        a(f"    s_waitcnt lgkmcnt({3-j})")
        a(f"    buffer_store_dwordx4 {vr(32+4*j,4)}, v19, s[8:11], s27 offen")
    a.ts(3)
    a.ts_flush()
    a("    s_endpgm")

import struct
def f2u(x): return struct.unpack("<I", struct.pack("<f", x))[0]

def k1(a):
    a.kernel("k1_kernel", (512,1,1), (256,1,1), 32768, 256 if a.TS else 144)
    a.ts_init(0)
    if a.TS: a("    v_lshrrev_b32 v255, 6, v0")
    a("""    s_cmp_ge_u32 s2, 512
    s_cbranch_scc1 k1_end
    s_cmp_ge_u32 s2, 256
    s_cbranch_scc1 k1_b1""")
    emit_a1(a, "s2")
    a.label("k1_b1")
    a("    s_sub_u32 s2, s2, 256")
    emit_b1(a, "s2")
    a.label("k1_end")
    a("    s_endpgm")

if __name__ == "__main__":
    a = Asm()
    a.TS = "--ts" in sys.argv
    k1(a)
    open(sys.argv[1], "w").write(a.text())
```

```python
import sys
from asmlib import *
from gen1 import UT_OFF, G1_OFF, Y2_OFF, MB4, f2u, k1, NT

CONV_WSTRIDE = 8512
CONV_KOFF = 4224
def emit_conv(a, wg="s2", wave="s22", ldsbase=0):
    a.srds([(4, "ws", MB4, UT_OFF), (8, "ssmk", None, 0), (12, "ws", MB4, Y2_OFF), (16, "ssmD", None, 0)])
    a(f"""    v_lshrrev_b32 v1, 6, v0
    v_and_b32 v2, 63, v0                 ; lane
    s_nop 0
    v_readfirstlane_b32 s22, v1          ; w
    s_lshl_b32 s23, {wg}, 2
    s_add_u32 s23, s23, s22              ; ch
    s_mul_i32 s24, s22, {CONV_WSTRIDE}
    s_add_u32 s24, s24, {ldsbase}        ; LB
    s_lshl_b32 s25, s23, 12              ; ch*4096
    v_lshlrev_b32 v3, 4, v2              ; lane*16
    s_add_u32 m0, s24, 96""")
    for i in range(4):
        a(f"    buffer_load_dwordx4 v3, s[4:7], s25 offen offset:{1024*i} lds")
    a(f"    s_add_u32 m0, s24, {CONV_KOFF + 160}")
    a("    s_nop 0")
    for i in range(4):
        a(f"    buffer_load_dwordx4 v3, s[8:11], s25 offen offset:{1024*i}{NT} lds")
    a(f"""    s_lshl_b32 s26, s23, 1
    s_and_b32 s26, s26, 0xfffffffc
    s_load_dword s27, s[16:17], s26      ; D pair
    s_load_dword s28, s[8:9], s25        ; k[0],k[1]
    v_mov_b32 v4, 0
    v_mov_b32 v5, 0
    v_mov_b32 v6, 0
    v_mov_b32 v7, 0
    v_min_u32 v8, 5, v2
    v_lshl_add_u32 v8, v8, 4, s24
    ds_write_b128 v8, v[4:7]
    v_min_u32 v8, 9, v2
    v_lshl_add_u32 v8, v8, 4, s24
    ds_write_b128 v8, v[4:7] offset:{CONV_KOFF}
    v_lshrrev_b32 v9, 4, v2              ; hh
    v_bfe_u32 v10, v2, 2, 2              ; r
    v_and_b32 v11, 3, v2                 ; cc
    v_lshlrev_b32 v12, 5, v11            ; 32 cc
    v_lshl_add_u32 v12, v9, 6, v12       ; + 64 hh
    v_lshl_add_u32 v12, v10, 3, v12      ; + 8 r
    v_add_u32 v12, s24, v12              ; vVaddr
    v_lshlrev_b32 v13, 3, v11            ; 8 cc
    v_lshlrev_b32 v14, 6, v9
    v_sub_u32 v13, v13, v14              ; - 64 hh
    v_lshlrev_b32 v14, 3, v10
    v_sub_u32 v13, v13, v14              ; - 8 r
    s_add_u32 s29, s24, {CONV_KOFF + 224}
    v_add_u32 v13, s29, v13              ; vWaddr
    s_waitcnt lgkmcnt(0)
    s_and_b32 s30, s23, 1
    s_cmp_eq_u32 s30, 0
    s_cselect_b32 s31, 16, 0
    s_lshl_b32 s27, s27, s31
    s_and_b32 s27, s27, 0xffff0000       ; D as f32
    s_lshl_b32 s28, s28, 16              ; k0 as f32
    v_mov_b32 v15, s27
    v_add_f32 v15, s28, v15
    v_cvt_pk_bf16_f32 v15, v15, v15
    v_mov_b32 v16, s24""")
    a.ts(1)
    a(f"""    s_waitcnt vmcnt(0)
    ds_write_b16 v16, v15 offset:{CONV_KOFF + 160}""")
    a.ts(2)
    V = 20
    W = 84
    ACC = 100
    NW = 4
    for J in range(16):
        for j in range(2):
            a(f"    ds_read_b64_tr_b16 {vr(V+4*J+2*j,2)}, v12 offset:{256*J + 32*j}")
        if J == 6: a("    s_waitcnt lgkmcnt(0)")
        if J == 13: a("    s_waitcnt lgkmcnt(0)")
    def loadW(g):
        w = W + 4 * (g % NW)
        for j in range(2):
            a(f"    ds_read_b64_tr_b16 {vr(w+2*j,2)}, v13 offset:{128*g + 32*(1-j)}")
    loadW(0); loadW(1); loadW(2)
    A2 = [228, 229]; A1 = [230, 231]; Y = [232, 233]; Z = 234; PK = 235; YA = 236
    a(f"    v_mov_b32 v{Z}, 0")
    a(f"    v_lshl_add_u32 v{YA}, v2, 1, s24")
    started = set()
    def reduce_tile(T):
        r0, r1, r2, r3 = [ACC + 4 * T + i for i in range(4)]
        p3 = (ACC + 4 * (T - 1) + 3) if T else Z
        a2, a2p = A2[T & 1], (A2[(T - 1) & 1] if T else Z)
        a1, a1p = A1[T & 1], (A1[(T - 1) & 1] if T else Z)
        y = Y[T & 1]
        ops = [
            (0, f"    v_add_f32_dpp v{a2}, v{p3}, v{r2} wave_ror:1 row_mask:0x1 bank_mask:0x1"),
            (0, f"    v_add_f32_dpp v{a1}, v{a2p}, v{r1} wave_ror:1 row_mask:0x1 bank_mask:0x1"),
            (1, f"    v_add_f32_dpp v{y}, v{a1p}, v{r0} wave_ror:1 row_mask:0x1 bank_mask:0x1"),
            (1, f"    v_add_f32_dpp v{a2}, v{r3}, v{r2} wave_shr:1 row_mask:0xf bank_mask:0xf"),
            (3, f"    v_add_f32_dpp v{a1}, v{a2}, v{r1} wave_shr:1 row_mask:0xf bank_mask:0xf"),
            (5, f"    v_add_f32_dpp v{y}, v{a1}, v{r0} wave_shr:1 row_mask:0xf bank_mask:0xf"),
        ]
        if T & 1:
            ops += [(6, f"    v_cvt_pk_bf16_f32 v{PK}, v{Y[0]}, v{Y[1]}"),
                    (7, f"    ds_write_b16 v{YA}, v{PK} offset:{128*(T-1)}"),
                    (7, f"    ds_write_b16_d16_hi v{YA}, v{PK} offset:{128*T}")]
        return ops
    pending = []
    for g in range(32):
        if g + 3 < 32: loadW(g + 3)
        a(f"    s_waitcnt lgkmcnt(WAIT_W{g})")
        Js = list(range((31 - g) // 2 + 1))
        for n, J in enumerate(Js):
            T = g + 2 * J
            c = vr(ACC + 4 * T, 4) if T in started else "0"
            started.add(T)
            a(f"    v_mfma_f32_16x16x32_bf16 {vr(ACC+4*T,4)}, {vr(V+4*J,4)}, {vr(W+4*(g%NW),4)}, {c}")
            while pending and pending[0][0] <= n: a(pending.pop(0)[1])
        while pending: a(pending.pop(0)[1])
        pending = reduce_tile(g)
    pending = [p for p in pending]
    while pending: a(pending.pop(0)[1])
    lines = a.cur
    q = []
    for i, l in enumerate(lines):
        s = l.strip()
        if s.startswith("ds_"): q.append(s)
        elif s.startswith("s_waitcnt") and "lgkmcnt(" in s:
            if "WAIT_W" in s:
                g = int(s.split("WAIT_W")[1].rstrip(")"))
                tag = f"v13 offset:{128*g}"
                idx = max(k for k, t in enumerate(q) if t.endswith(tag))
                n = len(q) - 1 - idx
                lines[i] = f"    s_waitcnt lgkmcnt({min(n,15)})"
                q = q[idx + 1:]
            else:
                n = int(s.split("lgkmcnt(")[1].split(")")[0])
                q = q[len(q) - n:] if n else []
    a.ts(3)
    a(f"""    s_waitcnt lgkmcnt(0)
    v_add_u32 v17, s24, v3""")
    for i in range(4):
        a(f"    ds_read_b128 {vr(20+4*i,4)}, v17 offset:{1024*i}")
    for i in range(4):
        a(f"    s_waitcnt lgkmcnt({3-i})")
        a(f"    buffer_store_dwordx4 {vr(20+4*i,4)}, v3, s[12:15], s25 offen offset:{1024*i}")

def conv_kernel(a):
    a.kernel("conv_kernel", (256,1,1), (256,1,1), 4 * CONV_WSTRIDE, 256)
    a.ts_init(1)
    if a.TS: a("    v_lshrrev_b32 v255, 6, v0")
    a("""    s_cmp_ge_u32 s2, 256
    s_cbranch_scc1 conv_end""")
    emit_conv(a)
    a.ts_flush()
    a.label("conv_end")
    a("    s_endpgm")

def emit_a3(a, wg="s2"):
    a.srds([(4, "ws", MB4, Y2_OFF), (8, "q", None, 0), (12, "out", None, 0)])
    a(f"""    s_lshr_b32 s20, {wg}, 4
    s_lshl_b32 s20, s20, 7              ; rt*128
    s_and_b32 s21, {wg}, 15
    s_lshl_b32 s21, s21, 6              ; ct*64
    v_lshrrev_b32 v1, 4, v0
    v_and_b32 v2, 15, v0
    v_lshl_add_u32 v3, v1, 3, s20       ; row0
    v_lshl_add_u32 v4, v2, 2, s21       ; ch0
    v_lshlrev_b32 v5, 11, v3
    v_lshl_add_u32 v5, v4, 1, v5
    v_add_u32 v9, 4096, v5
    v_add_u32 v10, 8192, v5
    v_add_u32 v11, 12288, v5
    v_lshlrev_b32 v13, 12, v4
    v_lshl_add_u32 v13, v3, 1, v13
    s_mov_b32 s23, 4096
    s_mov_b32 s24, 8192
    s_mov_b32 s25, 12288""")
    QR = 20; YR = 36
    addr = [5, 9, 10, 11]
    for r in range(8):
        off = " offset:2048" if r & 1 else ""
        a(f"    buffer_load_dwordx2 {vr(QR+2*r,2)}, v{addr[r>>1]}, s[8:11], 0 offen{off}{NT}")
    soff = ["0", "s23", "s24", "s25"]
    for c in range(4):
        a(f"    buffer_load_dwordx4 {vr(YR+4*c,4)}, v13, s[4:7], {soff[c]} offen")
    a("""    s_mov_b32 s22, 0xffff0000
    v_lshlrev_b32 v6, 12, v3
    v_lshl_add_u32 v6, v4, 1, v6
    s_waitcnt vmcnt(0)""")
    T = 60
    for r in range(8):
        t = T + 8 * (r & 1)
        for c in range(4):
            qs = QR + 2 * r + (c >> 1)
            ys = YR + 4 * c + (r >> 1)
            a(f"    v_lshlrev_b32 v{t+c}, 16, v{qs}" if c % 2 == 0 else f"    v_and_b32 v{t+c}, s22, v{qs}")
            a(f"    v_lshlrev_b32 v{t+4+c}, 16, v{ys}" if r % 2 == 0 else f"    v_and_b32 v{t+4+c}, s22, v{ys}")
        a(f"    v_pk_mul_f32 {vr(t,2)}, {vr(t,2)}, {vr(t+4,2)}")
        a(f"    v_pk_mul_f32 {vr(t+2,2)}, {vr(t+2,2)}, {vr(t+6,2)}")
        o = 80 + 2 * r
        a(f"    v_cvt_pk_bf16_f32 v{o}, v{t}, v{t+1}")
        a(f"    v_cvt_pk_bf16_f32 v{o+1}, v{t+2}, v{t+3}")
        if r: a(f"    s_mov_b32 s26, {4096*r}")
        a(f"    buffer_store_dwordx2 {vr(o,2)}, v6, s[12:15], {'s26' if r else '0'} offen")

def a3_kernel(a):
    a.kernel("a3_kernel", (256,1,1), (256,1,1), 0, 256 if a.TS else 104)
    a.ts_init(3)
    if a.TS: a("    v_lshrrev_b32 v255, 6, v0")
    a("""    s_cmp_ge_u32 s2, 256
    s_cbranch_scc1 a3_end""")
    emit_a3(a)
    a.ts_flush()
    a.label("a3_end")
    a("    s_endpgm")

if __name__ == "__main__":
    a = Asm()
    a.TS = "--ts" in sys.argv
    k1(a)
    conv_kernel(a)
    a3_kernel(a)
    open(sys.argv[1], "w").write(a.text())
```

```python
import sys
from asmlib import *
from gen1 import UT_OFF, G1_OFF, Y2_OFF, MB4, f2u, k1
from gen2 import conv_kernel, a3_kernel, emit_conv, emit_a3

FSTRIDE = 2048 + 8
B2_LDS = 11 * FSTRIDE + 64

def fl(x): return hex(f2u(float(x)))

def emit_b2(a, wg="s2", ldsbase=0, barrier="s_barrier"):
    a.srds([(4, "ws", MB4, G1_OFF), (8, "out", None, 0)])
    a(f"""    s_and_b32 s20, {wg}, 7
    s_lshr_b32 s21, {wg}, 6
    s_lshl_b32 s21, s21, 3
    s_add_u32 s20, s20, s21              ; slot
    s_lshr_b32 s21, {wg}, 3
    s_and_b32 s21, s21, 7                ; j
    v_lshrrev_b32 v1, 6, v0
    v_and_b32 v2, 63, v0                 ; lane
    s_nop 0
    v_readfirstlane_b32 s22, v1          ; w
    v_and_b32 v3, 15, v2
    v_lshrrev_b32 v4, 4, v2              ; h
    v_lshlrev_b32 v5, 14, v4             ; h*16384
    v_lshl_add_u32 v5, v3, 4, v5         ; + m*16
    s_lshl_b32 s23, s20, 17              ; slot*131072
    s_lshl_b32 s24, s22, 12              ; w*256*16
    s_add_u32 s23, s23, s24
    v_add_u32 v5, s23, v5
    v_add_u32 v6, 0x10000, v5            ; ks=1 (+4*16384)""")
    GF = 128
    for t in range(16):
        a(f"    buffer_load_dwordx4 {vr(GF+8*t,4)}, v5, s[4:7], 0 offen offset:{256*t}")
        a(f"    buffer_load_dwordx4 {vr(GF+8*t+4,4)}, v6, s[4:7], 0 offen offset:{256*t}")
    a(f"""    v_lshrrev_b32 v7, 1, v3              ; tl
    v_and_b32 v8, 1, v3                  ; part
    s_lshl_b32 s25, s21, 2               ; 4j
    s_cmp_eq_u32 s20, 0
    s_cselect_b32 s26, 1, 0              ; slot0
    s_cmp_ge_u32 s21, 4
    s_cselect_b32 s27, s26, 0
    s_cmp_eq_u32 s21, 0
    s_cselect_b32 s28, s26, 0
    s_and_b32 s29, s25, 15
    s_cmp_eq_u32 s27, 1
    s_cselect_b32 s25, s29, s25          ; t1 base
    v_add_u32 v9, s25, v7                ; t1
    v_cmp_eq_u32 vcc, 4, v7
    v_mov_b32 v10, 16
    v_cndmask_b32 v9, v9, v10, vcc
    v_cvt_f32_u32 v9, v9
    v_mul_f32 v9, {fl(1/32)}, v9         ; f = t1/32
    v_mov_b32 v10, {fl(1/64)}
    s_cmp_eq_u32 s27, 1
    s_cselect_b32 s30, 1.0, 0
    v_fma_f32 v9, s30, v10, v9           ; class32: f += 1/64
    v_cvt_f32_u32 v10, v8
    v_mul_f32 v10, {fl(0.25)}, v10
    s_cselect_b32 s31, 0, {fl(-0.25)}
    v_add_f32 v11, s31, v10
    s_lshl_b32 s29, s28, 1
    s_add_u32 s29, s29, 8
    v_cmp_gt_u32 vcc, s29, v3
    v_cndmask_b32 v12, 0, 1.0, vcc       ; colvalid
    s_cmp_eq_u32 s27, 1
    s_cselect_b32 s30, 0, 1.0
    v_mul_f32 v13, s30, v12              ; e0
    s_sub_u32 s29, s26, s27
    s_cmp_eq_u32 s29, 1
    s_cselect_b32 s30, 0, 1.0
    v_mul_f32 v14, s30, v12              ; e1
    v_lshlrev_b32 v15, 2, v4             ; 4h
    v_cvt_f32_u32 v15, v15""")
    BC = 16
    for ks in range(2):
        for i in range(8):
            t = 24 + i
            a(f"    v_add_f32 v{t}, {fl(16*ks + (i>>1))}, v15")
            a(f"    v_fma_f32 v{t}, v{t}, v9, v{10 if i % 2 == 0 else 11}")
        for i in range(8): a(f"    v_cos_f32 v{24+i}, v{24+i}")
        for i in range(8): a(f"    v_mul_f32 v{24+i}, v{24+i}, v{13 if i % 2 == 0 else 14}")
        for x in range(4): a(f"    v_cvt_pk_bf16_f32 v{BC+4*ks+x}, v{24+2*x}, v{25+2*x}")
    a("""    v_and_b32 v32, 31, v2                ; n (e2 or e1)
    v_lshrrev_b32 v33, 5, v2             ; hh
    v_cvt_f32_u32 v34, v32
    v_lshlrev_b32 v35, 2, v33
    v_cvt_f32_u32 v35, v35               ; 4hh""")
    a(f"    v_mul_f32 v36, {fl(1/32)}, v34        ; n/32")
    a(f"    v_mul_f32 v37, {fl(1/1024)}, v34      ; n/1024")
    CF = 40; SF = 48; NSF = 56; NCF = 64
    for ks in range(2):
        for i in range(8):
            d = (i & 3) + 8 * (2 * ks + (i >> 2))
            a(f"    v_add_f32 v{24+i}, {fl(d)}, v35")
            a(f"    v_mul_f32 v{24+i}, v{24+i}, v36")
        for i in range(8): a(f"    v_sin_f32 v{72+i}, v{24+i}")
        for i in range(8): a(f"    v_cos_f32 v{24+i}, v{24+i}")
        for x in range(4):
            a(f"    v_cvt_pk_bf16_f32 v{CF+4*ks+x}, v{24+2*x}, v{25+2*x}")
            a(f"    v_cvt_pk_bf16_f32 v{SF+4*ks+x}, v{72+2*x}, v{73+2*x}")
    for x in range(8):
        a(f"    v_xor_b32 v{NSF+x}, 0x80008000, v{SF+x}")
        a(f"    v_xor_b32 v{NCF+x}, 0x80008000, v{CF+x}")
    TC = 72; TS = 88
    for rI in range(16):
        d = (rI & 3) + 8 * (rI >> 2)
        a(f"    v_add_f32 v{TC+rI}, {fl(d)}, v35")
        a(f"    v_mul_f32 v{TC+rI}, v{TC+rI}, v37")
    for rI in range(16): a(f"    v_sin_f32 v{TS+rI}, v{TC+rI}")
    for rI in range(16): a(f"    v_cos_f32 v{TC+rI}, v{TC+rI}")
    a.ts(1)
    a(f"""    v_min_u32 v24, 10, v3
    v_mul_u32_u24 v24, {FSTRIDE}, v24
    v_lshl_add_u32 v24, v4, 3, v24       ; + 4h*2
    s_lshl_b32 s29, s22, 9               ; w*256*2
    s_add_u32 s29, s29, {ldsbase}
    v_add_u32 v24, s29, v24""")
    for t in range(16):
        d = 104 + 4 * (t % 4)
        a(f"    s_waitcnt vmcnt({30 - 2*t})")
        a(f"    v_mfma_f32_16x16x32_bf16 {vr(d,4)}, {vr(GF+8*t,4)}, {vr(BC,4)}, 0")
        a(f"    v_mfma_f32_16x16x32_bf16 {vr(d,4)}, {vr(GF+8*t+4,4)}, {vr(BC+4,4)}, {vr(d,4)}")
        if t >= 2:
            tp = t - 2; dp = 104 + 4 * (tp % 4); pk = 120 + 2 * (tp % 2)
            a(f"    v_cvt_pk_bf16_f32 v{pk}, v{dp}, v{dp+1}")
            a(f"    v_cvt_pk_bf16_f32 v{pk+1}, v{dp+2}, v{dp+3}")
            a(f"    ds_write_b64 v24, {vr(pk,2)} offset:{32*tp}")
    for tp in (14, 15):
        dp = 104 + 4 * (tp % 4); pk = 120 + 2 * (tp % 2)
        a(f"    v_cvt_pk_bf16_f32 v{pk}, v{dp}, v{dp+1}")
        a(f"    v_cvt_pk_bf16_f32 v{pk+1}, v{dp+2}, v{dp+3}")
        a(f"    ds_write_b64 v24, {vr(pk,2)} offset:{32*tp}")
    a("    s_waitcnt lgkmcnt(0)")
    a(f"    {barrier}")
    a.ts(2)
    a(f"""    v_bfe_u32 v25, v2, 2, 2              ; r
    v_and_b32 v26, 3, v2                 ; cc
    v_bfe_u32 v27, v2, 4, 1              ; mh
    v_lshl_add_u32 v25, v33, 2, v25      ; r + 4hh
    v_lshlrev_b32 v25, 6, v25            ; *32 elems*2B
    v_lshl_add_u32 v25, v27, 5, v25      ; + 16 mh *2
    v_lshl_add_u32 v25, v26, 3, v25      ; + 4cc*2
    s_mul_i32 s29, s22, {2*FSTRIDE}
    s_add_u32 s29, s29, {ldsbase}
    v_add_u32 v25, s29, v25              ; F[2w] base""")
    FR = 104; FI = 112
    def load_data(addr):
        for p, base in ((0, FR), (1, FI)):
            for ks in range(2):
                for j in range(2):
                    a(f"    ds_read_b64_tr_b16 {vr(base+4*ks+2*j,2)}, v{addr} offset:{p*FSTRIDE + 512*(2*ks+j)}")
    P = 128; Q = 144; DR = 160; DI = 176; HR = 192; HI = 200; Y = 208; PK = 224
    def pq():
        a(f"    v_mfma_f32_32x32x16_bf16 {vr(P,16)}, {vr(FR,4)}, {vr(CF,4)}, 0")
        a(f"    v_mfma_f32_32x32x16_bf16 {vr(Q,16)}, {vr(FR,4)}, {vr(NSF,4)}, 0")
        a(f"    v_mfma_f32_32x32x16_bf16 {vr(P,16)}, {vr(FR+4,4)}, {vr(CF+4,4)}, {vr(P,16)}")
        a(f"    v_mfma_f32_32x32x16_bf16 {vr(Q,16)}, {vr(FR+4,4)}, {vr(NSF+4,4)}, {vr(Q,16)}")
    def vrow(sg, rowaddr):
        s_, c_ = (SF, CF) if sg > 0 else (NSF, NCF)
        a(f"    v_mfma_f32_32x32x16_bf16 {vr(DR,16)}, {vr(FI,4)}, {vr(s_,4)}, {vr(P,16)}")
        a(f"    v_mfma_f32_32x32x16_bf16 {vr(DI,16)}, {vr(FI,4)}, {vr(c_,4)}, {vr(Q,16)}")
        a(f"    v_mfma_f32_32x32x16_bf16 {vr(DR,16)}, {vr(FI+4,4)}, {vr(s_+4,4)}, {vr(DR,16)}")
        a(f"    v_mfma_f32_32x32x16_bf16 {vr(DI,16)}, {vr(FI+4,4)}, {vr(c_+4,4)}, {vr(DI,16)}")
        T1 = 208; T2 = 224
        for rI in range(16):
            a(f"    v_mul_f32 v{T1+rI}, v{DR+rI}, v{TC+rI}")
            a(f"    v_mul_f32 v{T2+rI}, v{DI+rI}, v{TC+rI}")
        for rI in range(16):
            a(f"    v_fma_f32 v{T1+rI}, v{DI+rI}, v{TS+rI}, v{T1+rI}")
            a(f"    v_fma_f32 v{T2+rI}, -v{DR+rI}, v{TS+rI}, v{T2+rI}")
        for x in range(8):
            a(f"    v_cvt_pk_bf16_f32 v{HR+x}, v{T1+2*x}, v{T1+2*x+1}")
            a(f"    v_cvt_pk_bf16_f32 v{HI+x}, v{T2+2*x}, v{T2+2*x+1}")
        a(f"    v_mfma_f32_32x32x16_bf16 {vr(Y,16)}, {vr(HR,4)}, {vr(CF,4)}, 0")
        a(f"    v_mfma_f32_32x32x16_bf16 {vr(Y,16)}, {vr(HR+4,4)}, {vr(CF+4,4)}, {vr(Y,16)}")
        a(f"    v_mfma_f32_32x32x16_bf16 {vr(Y,16)}, {vr(HI,4)}, {vr(SF,4)}, {vr(Y,16)}")
        a(f"    v_mfma_f32_32x32x16_bf16 {vr(Y,16)}, {vr(HI+4,4)}, {vr(SF+4,4)}, {vr(Y,16)}")
        for x in range(8):
            a(f"    v_cvt_pk_bf16_f32 v{PK+x}, v{Y+2*x}, v{Y+2*x+1}")
        for b in (0, 4):
            a(f"    v_permlane32_swap_b32 v{PK+b}, v{PK+b+2}")
            a(f"    v_permlane32_swap_b32 v{PK+b+1}, v{PK+b+3}")
        a(f"    buffer_store_dwordx4 {vr(PK,4)}, v{rowaddr}, s[8:11], 0 offen")
        a(f"    buffer_store_dwordx4 {vr(PK+4,4)}, v{rowaddr}, s[8:11], 0 offen offset:32")
    load_data(25)
    a(f"""    s_add_u32 s30, s25, s22              ; t1
    s_lshl_b32 s30, s30, 6
    s_cmp_eq_u32 s27, 1
    s_cselect_b32 s31, 32, s20           ; t2
    s_add_u32 s30, s30, s31              ; t
    s_sub_u32 s31, 2048, s30             ; S - t
    s_cmp_eq_u32 s30, 0
    s_cselect_b32 s31, 1024, s31
    s_cselect_b32 s29, 1, 0
    v_lshlrev_b32 v28, 6, v32            ; 64*e1
    v_lshl_add_u32 v28, v33, 4, v28      ; + 16 hh
    v_add_u32 v28, 2048, v28
    s_lshl_b32 s30, s30, 12
    s_lshl_b32 s31, s31, 12
    v_add_u32 v29, s30, v28
    v_add_u32 v30, s31, v28
    s_waitcnt lgkmcnt(0)""")
    pq()
    vrow(+1, 29)
    a(f"""    s_cmp_eq_u32 s29, 1
    s_cbranch_scc0 b2_norm
    v_add_u32 v25, {8*FSTRIDE}, v25""")
    load_data(25)
    a("    s_waitcnt lgkmcnt(0)")
    pq()
    a("    s_nop 7\n    s_nop 7")
    a.label("b2_norm")
    vrow(-1, 30)
    a.ts(3)

def b2_kernel(a):
    a.kernel("b2_kernel", (256,1,1), (256,1,1), B2_LDS, 256)
    a.ts_init(2)
    a("""    s_cmp_ge_u32 s2, 256
    s_cbranch_scc1 b2_end""")
    emit_b2(a)
    if a.TS: a("    v_lshrrev_b32 v255, 6, v0")
    a.ts_flush()
    a.label("b2_end")
    a("    s_endpgm")

if __name__ == "__main__":
    a = Asm()
    a.TS = "--ts" in sys.argv or "--cyc" in sys.argv
    if "--cyc" in sys.argv: a.TSI = "s_memtime"
    k1(a)
    conv_kernel(a)
    b2_kernel(a)
    a3_kernel(a)
    open(sys.argv[1], "w").write(a.text())
```

```python
import asmlint
NAME = "concat_heads__ssm_conv_h3__spectral_fnet__prompt"
HEADER = """; Kernarg layout (112 bytes, ptrs only, base s[0:1]):
"""
ARG = dict(q=0, k=8, v=16, shift=24, ssmk=32, ssmD=40, x=48, sre=56, sim=64, hre=72, him=80, out=88, dbg=96, ws=104)
SIZE = dict(q=4194304, k=4194304, v=4194304, shift=8192, ssmk=4194304, ssmD=2048, x=4194304,
            sre=8388608, sim=8388608, hre=2097152, him=2097152, out=8388608, dbg=256, ws=268435456)

class Asm:
    def __init__(self):
        self.kernels = []
        self.launches = []
        self.descs = []
        self.cur = None
    def __call__(self, s=""):
        for l in s.split("\n"):
            self.cur.append(l)
    def label(self, l):
        self.cur.append(l + ":")
    def kernel(self, name, grid, block, lds, vgpr, sgpr=96, accum=None, launch=True):
        if launch: self.launches.append((name, grid, block, lds))
        if accum is None: accum = min(256, (vgpr + 3) // 4 * 4)
        self.descs.append((name, vgpr, sgpr, accum))
        self.cur = []
        self.kernels.append((name, self.cur))
    def relaunch(self, name, grid, block, lds):
        self.launches.append((name, grid, block, lds))
    def ptr(self, sreg, arg):
        self(f"    s_load_dwordx2 s[{sreg}:{sreg+1}], s[0:1], {ARG[arg]}")
    def srd_fin(self, sreg, size, off=0):
        if off:
            self(f"    s_add_u32 s{sreg}, s{sreg}, {off}\n    s_addc_u32 s{sreg+1}, s{sreg+1}, 0")
        self(f"    s_mov_b32 s{sreg+2}, {size}\n    s_mov_b32 s{sreg+3}, 0x00020000")
    def srds(self, specs):
        for (r, arg, size, off) in specs: self.ptr(r, arg)
        self("    s_waitcnt lgkmcnt(0)")
        for (r, arg, size, off) in specs: self.srd_fin(r, SIZE[arg] if size is None else size, off)
    TS = False
    TSI = "s_memrealtime"
    TS_OFF = 16 << 20
    def ts_init(self, kidx):
        if not self.TS: return
        self.ts_k = kidx
        self(f"    {self.TSI} s[86:87]")
        self(f"    s_load_dwordx2 s[84:85], s[0:1], {ARG['ws']}")
        self("    s_mov_b32 s94, s2")
        self("    s_waitcnt lgkmcnt(0)")
        self("    s_mov_b32 s88, s86")
    def ts(self, i):
        if not self.TS: return
        self(f"    {self.TSI} s[86:87]")
        self("    s_waitcnt lgkmcnt(0)")
        self(f"    s_mov_b32 s{88+i}, s86")
    def ts_flush(self):
        if not self.TS: return
        self(f"""    s_waitcnt vmcnt(0) lgkmcnt(0)
    {self.TSI} s[86:87]
    s_waitcnt lgkmcnt(0)
    s_mov_b32 s92, s86
    s_add_u32 s84, s84, {self.TS_OFF + self.ts_k * 4096 * 32}
    s_addc_u32 s85, s85, 0
    s_mov_b32 s86, 0x400000
    s_mov_b32 s87, 0x20000
    v_mov_b32 v200, s88
    v_mov_b32 v201, s89
    v_mov_b32 v202, s90
    v_mov_b32 v203, s91
    v_mov_b32 v204, s92
    s_getreg_b32 s93, hwreg(HW_REG_XCC_ID)
    v_mov_b32 v205, s93
    s_getreg_b32 s93, hwreg(HW_REG_HW_ID)
    v_mov_b32 v206, s93
    v_mov_b32 v207, 0
    v_mbcnt_lo_u32_b32 v208, -1, 0
    v_mbcnt_hi_u32_b32 v208, -1, v208
    v_cmp_eq_u32 vcc, 0, v208
    s_and_saveexec_b64 s[82:83], vcc
    v_readfirstlane_b32 s93, v255
    s_lshl_b32 s94, s94, 3
    s_add_u32 s94, s94, s93
    s_lshl_b32 s94, s94, 5
    v_mov_b32 v209, s94
    s_nop 4
    buffer_store_dwordx4 v[200:203], v209, s[84:87], 0 offen
    buffer_store_dwordx4 v[204:207], v209, s[84:87], 0 offen offset:16
    s_waitcnt vmcnt(0)
    s_mov_b64 exec, s[82:83]""")
    def code_prefetch(self, start_label, end_label, maxbytes, nwg=16, vtmp=60, stmp=60, tid="v0", nthreads=256):
        lab = f"pf{len(self.cur)}x{len(self.kernels)}"
        per = nthreads * 16
        n = (maxbytes + per - 1) // per
        self(f"""    s_cmp_ge_u32 s2, {nwg}
    s_cbranch_scc1 {lab}_skip
    s_getpc_b64 s[{stmp}:{stmp+1}]
{lab}_pc:
    s_sub_u32 s{stmp}, s{stmp}, {lab}_pc-{start_label}
    s_subb_u32 s{stmp+1}, s{stmp+1}, 0
    v_lshlrev_b32 v{vtmp}, 4, {tid}""")
        for i in range(n):
            if i: self(f"    v_add_u32 v{vtmp}, {per}, v{vtmp}")
            self(f"    v_min_u32 v{vtmp+1}, {end_label}-{start_label}-16, v{vtmp}")
            self(f"    global_load_dwordx4 v[{vtmp+2}:{vtmp+5}], v{vtmp+1}, s[{stmp}:{stmp+1}]")
        self(f"{lab}_skip:")
    def text(self, lint=True):
        out = [HEADER.rstrip("\n")]
        for (n, g, b, l) in self.launches:
            out.append(f"; @launch kernel={n} grid=({g[0]},{g[1]},{g[2]}) block=({b[0]},{b[1]},{b[2]}) lds={l}")
        out.append('.amdgcn_target "amdgcn-amd-amdhsa--gfx950"')
        out.append(".text")
        for (name, lines) in self.kernels:
            if lint:
                lines2, npad = asmlint.pad(lines)
                errs = asmlint.check_waits(lines2, name)
                for e in errs[:20]: print("WAITERR", e)
                if npad: print(f"{name}: {npad} auto pads")
            else:
                lines2 = lines
            out.append(f".globl {name}\n.p2align 8\n.type {name},@function\n{name}:")
            out += lines2
        out.append("text_end:")
        out.append('.section .rodata,"a"')
        for (n, v, s, a) in self.descs:
            out.append(".p2align 6")
            out.append(f".amdhsa_kernel {n}")
            out.append(f"  .amdhsa_next_free_vgpr {v}")
            out.append(f"  .amdhsa_next_free_sgpr {s}")
            out.append(f"  .amdhsa_accum_offset {a}")
            out.append("  .amdhsa_group_segment_fixed_size 0")
            out.append("  .amdhsa_kernarg_size 112")
            out.append("  .amdhsa_user_sgpr_count 2")
            out.append("  .amdhsa_user_sgpr_kernarg_segment_ptr 1")
            out.append("  .amdhsa_system_sgpr_workgroup_id_x 1")
            out.append("  .amdhsa_float_denorm_mode_32 3")
            out.append(".end_amdhsa_kernel")
        return "\n".join(out) + "\n"

def vr(b, n): return f"v[{b}:{b+n-1}]" if n > 1 else f"v{b}"
def sr(b, n): return f"s[{b}:{b+n-1}]" if n > 1 else f"s{b}"
```

```python
import sys
from asmlib import *

UT_OFF = 0
G1_OFF = 4 << 20
Y2_OFF = 8 << 20
MB4 = 4 << 20
import os
NT = ' nt' if os.environ.get('NT', '1') == '1' else ''

def emit_a1(a, wg="s2"):
    a.srds([(4, "k", None, 0), (8, "v", None, 0), (12, "shift", None, 0), (16, "ws", MB4, UT_OFF)])
    a(f"""    s_lshr_b32 s20, {wg}, 4
    s_lshl_b32 s20, s20, 7              ; rt*128
    s_and_b32 s21, {wg}, 15
    s_lshl_b32 s21, s21, 6              ; ct*64
    v_lshrrev_b32 v1, 4, v0
    v_and_b32 v2, 15, v0
    v_lshl_add_u32 v3, v1, 3, s20       ; row0
    v_lshl_add_u32 v4, v2, 2, s21       ; ch0
    v_lshlrev_b32 v5, 11, v3
    v_lshl_add_u32 v5, v4, 1, v5
    v_subrev_u32 v6, 6144, v5
    v_subrev_u32 v7, 4096, v5
    v_subrev_u32 v8, 2048, v5
    v_add_u32 v9, 4096, v5
    v_add_u32 v10, 8192, v5
    v_add_u32 v11, 12288, v5
    v_lshlrev_b32 v12, 3, v4""")
    KR = 20
    VR = 42
    SR = 60
    a(f"    buffer_load_dwordx4 {vr(SR,4)}, v12, s[12:15], 0 offen")
    a(f"    buffer_load_dwordx4 {vr(SR+4,4)}, v12, s[12:15], 0 offen offset:16")
    for i, ad in enumerate((6, 7, 8)):
        a(f"    buffer_load_dwordx2 {vr(KR+2*i,2)}, v{ad}, s[4:7], 0 offen{NT}")
    addr = [5, 9, 10, 11]
    for r in range(8):
        off = " offset:2048" if r & 1 else ""
        a(f"    buffer_load_dwordx2 {vr(KR+6+2*r,2)}, v{addr[r>>1]}, s[4:7], 0 offen{off}{NT}")
    for r in range(8):
        off = " offset:2048" if r & 1 else ""
        a(f"    buffer_load_dwordx2 {vr(VR+2*r,2)}, v{addr[r>>1]}, s[8:11], 0 offen{off}{NT}")
    SK = 70
    KF = 88
    a("    s_mov_b32 s22, 0xffff0000")
    a.ts(1)
    a("    s_waitcnt vmcnt(19)")
    for p in range(2):
        for e in range(2):
            c = 2 * p + e
            d0, d1 = SR + 2 * c, SR + 2 * c + 1
            a(f"    v_lshlrev_b32 v{SK+0+2*p+e}, 16, v{d0}")
            a(f"    v_and_b32 v{SK+4+2*p+e}, s22, v{d0}")
            a(f"    v_lshlrev_b32 v{SK+8+2*p+e}, 16, v{d1}")
            a(f"    v_and_b32 v{SK+12+2*p+e}, s22, v{d1}")
    def unpack(dst, src):
        for p in range(2):
            a(f"    v_lshlrev_b32 v{dst+2*p}, 16, v{src+p}")
            a(f"    v_and_b32 v{dst+2*p+1}, s22, v{src+p}")
    for r in range(11):
        a(f"    s_waitcnt vmcnt({18 - r})")
        unpack(KF + 4 * r, KR + 2 * r)
    VF = 132
    for r in range(8):
        a(f"    s_waitcnt vmcnt({7 - r})")
        vf = VF + 4 * (r & 1)
        unpack(vf, VR + 2 * r)
        for p in range(2):
            t = KF + 4 * r + 2 * p
            kk = lambda rr: vr(KF + 4 * rr + 2 * p, 2)
            sk = lambda j: vr(SK + 4 * j + 2 * p, 2)
            a(f"    v_pk_mul_f32 {vr(t,2)}, {kk(r)}, {sk(3)}")
            a(f"    v_pk_fma_f32 {vr(t,2)}, {kk(r+1)}, {sk(2)}, {vr(t,2)}")
            a(f"    v_pk_fma_f32 {vr(t,2)}, {kk(r+2)}, {sk(1)}, {vr(t,2)}")
            a(f"    v_pk_fma_f32 {vr(t,2)}, {kk(r+3)}, {sk(0)}, {vr(t,2)}")
            a(f"    v_pk_mul_f32 {vr(t,2)}, {vr(t,2)}, {vr(vf+2*p,2)}")
    a.ts(2)
    OUT = 20
    a("""    v_lshlrev_b32 v13, 12, v4
    v_lshl_add_u32 v13, v3, 1, v13
    s_mov_b32 s23, 4096
    s_mov_b32 s24, 8192
    s_mov_b32 s25, 12288""")
    soff = ["0", "s23", "s24", "s25"]
    for c in range(4):
        p, e = c >> 1, c & 1
        for j in range(4):
            u0 = KF + 4 * (2 * j) + 2 * p + e
            u1 = KF + 4 * (2 * j + 1) + 2 * p + e
            a(f"    v_cvt_pk_bf16_f32 v{OUT+4*c+j}, v{u0}, v{u1}")
        a(f"    buffer_store_dwordx4 {vr(OUT+4*c,4)}, v13, s[16:19], {soff[c]} offen")
    a.ts(3)
    a.ts_flush()
    a("    s_endpgm")

def emit_b1(a, wg="s2"):
    a.srds([(4, "x", None, 0), (8, "ws", MB4, G1_OFF)])
    a(f"""    s_and_b32 s20, {wg}, 7               ; g
    s_lshr_b32 s21, {wg}, 3              ; ct
    v_lshrrev_b32 v1, 6, v0
    v_and_b32 v2, 63, v0                 ; lane
    s_nop 0
    v_readfirstlane_b32 s22, v1          ; w
    s_lshl_b32 s23, s20, 2
    s_add_u32 s23, s23, s22              ; s1 = 4g + w
    s_lshl_b32 s24, s22, 12
    v_lshrrev_b32 v3, 2, v2              ; lane>>2  (0..15)
    v_and_b32 v4, 3, v2
    v_lshrrev_b32 v5, 5, v2
    v_lshlrev_b32 v5, 1, v5
    v_xor_b32 v4, v4, v5                 ; chunk
    v_lshlrev_b32 v6, 16, v3
    v_lshl_add_u32 v6, v4, 4, v6         ; + chunk*16
    s_lshl_b32 s25, s23, 11              ; s1*2048
    s_lshl_b32 s26, s21, 6               ; ct*64
    s_add_u32 s25, s25, s26
    v_add_u32 v6, s25, v6""")
    for i in range(4):
        a(f"    s_add_u32 m0, s24, {1024*i}")
        if i: a(f"    s_mov_b32 s27, {i << 20}")
        else: a("    s_nop 0")
        a(f"    buffer_load_dwordx4 v6, s[4:7], {'s27' if i else '0'} offen{NT} lds")
    a("""    v_and_b32 v7, 15, v2                 ; m
    v_lshrrev_b32 v8, 4, v2              ; h
    v_lshrrev_b32 v9, 1, v7              ; m>>1
    v_and_b32 v10, 1, v7                 ; part
    v_lshlrev_b32 v11, 8, v8             ; 256 h
    v_add_u32 v11, s23, v11              ; s1 + 256h
    v_cvt_f32_u32 v11, v11
    v_mul_f32 v11, 0x3a000000, v11       ; /2048
    v_cvt_f32_u32 v12, v10
    v_mul_f32 v12, 0.25, v12             ; phase = part/4 -> 0x3e800000""".replace("v_mul_f32 v12, 0.25, v12", "v_mul_f32 v12, 0x3e800000, v12"))
    AF = 32
    for mt in range(4):
        a(f"    v_add_u32 v13, {8*mt}, v9")
        a("    v_cvt_f32_u32 v13, v13")
        a("    v_mov_b32 v14, v12")
        if mt == 0:
            a("""    v_cmp_eq_u32 vcc, 1, v7
    v_mov_b32 v15, 0x42000000
    v_cndmask_b32 v13, v13, v15, vcc
    v_cvt_f32_u32 v15, s23
    v_mul_f32 v15, 0xbc800000, v15       ; -s1/64
    v_cndmask_b32 v14, v14, v15, vcc""")
        a("""    v_fma_f32 v16, v13, v11, v14         ; a0
    v_mul_f32 v17, 0x3c800000, v13""")
        for ks in range(2):
            for i in range(8):
                n = 32 * ks + i
                t = 20 + i
                if n == 0: a(f"    v_mov_b32 v{t}, v16")
                else:
                    a(f"    v_mov_b32 v18, {hex(f2u(float(n)))}")
                    a(f"    v_fma_f32 v{t}, v18, v17, v16")
            for i in range(8): a(f"    v_cos_f32 v{20+i}, v{20+i}")
            for j in range(4):
                a(f"    v_cvt_pk_bf16_f32 v{AF + 8*mt + 4*ks + j}, v{20+2*j}, v{21+2*j}")
    a("""    v_lshrrev_b32 v18, 2, v7             ; r = m>>2
    v_and_b32 v19, 3, v7                 ; cc
    v_lshl_add_u32 v18, v8, 3, v18       ; 8h + r
    v_lshlrev_b32 v18, 6, v18            ; *64
    v_lshl_add_u32 v18, v19, 3, v18      ; + 8cc
    v_add_u32 v18, s24, v18
    v_and_b32 v19, 1, v8
    v_lshlrev_b32 v19, 5, v19            ; 32*(h&1)
    v_add_u32 v28, v18, v19              ; nt=0
    v_xor_b32 v19, 32, v19
    v_add_u32 v29, v18, v19              ; nt=1""")
    a.ts(1)
    a("    s_waitcnt vmcnt(0)")
    a.ts(2)
    BF = 64
    for nt in range(2):
        for ks in range(2):
            for j in range(2):
                d = BF + 8 * nt + 4 * ks + 2 * j
                a(f"    ds_read_b64_tr_b16 {vr(d,2)}, v{28+nt} offset:{2048*ks + 256*j}")
    AC = 80
    a("    s_waitcnt lgkmcnt(0)")
    for ks in range(2):
        for mt in range(4):
            for nt in range(2):
                d = AC + 8 * mt + 4 * nt
                c = "0" if ks == 0 else vr(d, 4)
                a(f"    v_mfma_f32_16x16x32_bf16 {vr(d,4)}, {vr(AF+8*mt+4*ks,4)}, {vr(BF+8*nt+4*ks,4)}, {c}")
    a("""    v_lshlrev_b32 v18, 6, v8             ; 2h*32 = 64h
    v_add_u32 v18, v18, v7               ; + n
    v_lshlrev_b32 v18, 4, v18            ; *16
    s_lshl_b32 s27, s22, 2
    s_add_u32 s27, s27, 16384
    v_add_u32 v18, s27, v18""")
    for mt in range(4):
        for nt in range(2):
            d = AC + 8 * mt + 4 * nt
            a(f"    v_cvt_pk_bf16_f32 v20, v{d}, v{d+1}")
            a(f"    v_cvt_pk_bf16_f32 v21, v{d+2}, v{d+3}")
            a(f"    ds_write_b32 v18, v20 offset:{4096*mt + 256*nt}")
            a(f"    ds_write_b32 v18, v21 offset:{4096*mt + 256*nt + 512}")
    a("""    s_waitcnt lgkmcnt(0)
    s_barrier
    v_lshlrev_b32 v18, 4, v0
    v_add_u32 v18, 16384, v18""")
    for j in range(4):
        a(f"    ds_read_b128 {vr(32+4*j,4)}, v18 offset:{4096*j}")
    a("""    v_lshrrev_b32 v19, 5, v0
    v_lshlrev_b32 v19, 17, v19           ; *131072
    v_and_b32 v20, 31, v0
    v_lshl_add_u32 v19, v20, 4, v19
    s_lshl_b32 s25, s20, 14              ; g*16384
    s_lshl_b32 s26, s21, 9               ; ct*512
    s_add_u32 s25, s25, s26
    v_add_u32 v19, s25, v19""")
    for j in range(4):
        a(f"    s_mov_b32 s27, {j << 20}")
        a(f"    s_waitcnt lgkmcnt({3-j})")
        a(f"    buffer_store_dwordx4 {vr(32+4*j,4)}, v19, s[8:11], s27 offen")
    a.ts(3)
    a.ts_flush()
    a("    s_endpgm")

import struct
def f2u(x): return struct.unpack("<I", struct.pack("<f", x))[0]

def k1(a):
    a.kernel("k1_kernel", (512,1,1), (256,1,1), 32768, 256 if a.TS else 148)
    if os.environ.get("PF", "1") == "1":
        a.code_prefetch("k1_kernel", "text_end", 24576, nwg=16, vtmp=240 if a.TS else 140, stmp=60)
    a.ts_init(0)
    if a.TS: a("    v_lshrrev_b32 v255, 6, v0")
    a("""    s_cmp_ge_u32 s2, 512
    s_cbranch_scc1 k1_end
    s_cmp_ge_u32 s2, 256
    s_cbranch_scc1 k1_b1""")
    emit_a1(a, "s2")
    a.label("k1_b1")
    a("    s_sub_u32 s2, s2, 256")
    emit_b1(a, "s2")
    a.label("k1_end")
    a("    s_endpgm")

if __name__ == "__main__":
    a = Asm()
    a.TS = "--ts" in sys.argv
    k1(a)
    open(sys.argv[1], "w").write(a.text())
```

```python
import sys
from asmlib import *
base = open("v4.s").read().split("\n")
idx = [i for i,l in enumerate(base) if l.startswith("; @launch")]
def mk(out, mode):
    name = "pre_kernel"
    code = f".globl {name}\n.p2align 8\n.type {name},@function\n{name}:\n"
    code += "    s_cmp_ge_u32 s2, 256\n    s_cbranch_scc1 pre_end\n"
    bufs = ["k", "v", "x", "ssmk", "q"]
    for i, b in enumerate(bufs):
        code += f"    s_load_dwordx2 s[{4+4*i}:{5+4*i}], s[0:1], {ARG[b]}\n"
    code += "    s_waitcnt lgkmcnt(0)\n"
    for i, b in enumerate(bufs):
        code += f"    s_mov_b32 s{6+4*i}, 0x400000\n    s_mov_b32 s{7+4*i}, 0x20000\n"
    if mode == "full" or mode == "fullnt":
        nt = " nt" if mode == "fullnt" else ""
        code += "    s_lshl_b32 s3, s2, 14\n    v_lshlrev_b32 v1, 4, v0\n    v_add_u32 v1, s3, v1\n"
        r = 8
        for i in range(5):
            for j in range(4):
                code += f"    s_mov_b32 s30, {4096*j}\n    buffer_load_dwordx4 v[{r}:{r+3}], v1, s[{4+4*i}:{7+4*i}], s30 offen{nt}\n"
                r += 4
    elif mode == "page":
        code += "    s_lshl_b32 s3, s2, 14\n    v_and_b32 v1, 3, v0\n    v_lshlrev_b32 v1, 12, v1\n    v_add_u32 v1, s3, v1\n"
        for i in range(5):
            code += f"    buffer_load_dword v{8+i}, v1, s[{4+4*i}:{7+4*i}], 0 offen\n"
    code += "    s_waitcnt vmcnt(0)\npre_end:\n    s_endpgm\n"
    kd = f".p2align 6\n.amdhsa_kernel {name}\n  .amdhsa_next_free_vgpr 96\n  .amdhsa_next_free_sgpr 48\n  .amdhsa_accum_offset 96\n  .amdhsa_group_segment_fixed_size 0\n  .amdhsa_kernarg_size 112\n  .amdhsa_user_sgpr_count 2\n  .amdhsa_user_sgpr_kernarg_segment_ptr 1\n  .amdhsa_system_sgpr_workgroup_id_x 1\n.end_amdhsa_kernel\n"
    lines = [f"; @launch kernel={name} grid=(256,1,1) block=(256,1,1) lds=0"] + [base[i] for i in idx]
    txt = "\n".join(base[:idx[0]] + lines + base[idx[-1]+1:])
    txt = txt.replace('.section .rodata,"a"\n', code + '.section .rodata,"a"\n' + kd, 1)
    open(out, "w").write(txt)
mk("h1.s", "full"); mk("h2.s", "page"); mk("h3.s", "fullnt")
```

```python
import sys, os, struct
import asmlint
from asmlib import NAME, HEADER, ARG, SIZE, vr, sr

def f2u(x): return struct.unpack("<I", struct.pack("<f", x))[0]
def fl(x): return hex(f2u(float(x)))
ENV = lambda k, d: os.environ.get(k, d)
TS = ENV("TS", "0") == "1"
NT = " nt" if ENV("NT", "0") == "1" else ""
SC = " sc1"
PFN = int(ENV("PFN", "32"))
PRIO = int(ENV("PRIO", "1"))
PSL = int(ENV("PSL", "1"))
LSL = int(ENV("LSL", "1"))
LOCAL = ENV("LOCAL", "1") == "1"
SCA = "" if LOCAL else " sc1"
FORCE_REC = ENV("FORCE_REC", "0") == "1"
NOB2 = ENV("NOB2", "0") == "1"
CODE_KB = int(ENV("CODE_KB", "24"))

UT_OFF, G1_OFF, Y2_OFF, FL_OFF, TS_OFF = 0, 4 << 20, 8 << 20, 12 << 20, 16 << 20
MB4 = 4 << 20
CONV_WSTRIDE = 8512; CONV_KOFF = 4224
BREG = 4 * CONV_WSTRIDE
EOFF = BREG + 16384
SYNC = BREG + 32768
LDS_TOTAL = SYNC + 64
FSTRIDE = 2048 + 8
SY_NONCE, SY_A1, SY_B1, SY_B2, SY_A2, SY_MF1, SY_MF2, SY_MG, SY_BX = [SYNC + 4 * i for i in range(9)]
MB1, MB2, MBL, MBG, MR1, MR2 = 0, 4096, 8192, 12288, 16384, 20480
LOC = 24576
FL_SIZE = 65536
KA = dict(q=52, k=54, v=56, shift=58, ssmk=60, ssmD=62, x=64, out=68, dbg=70, ws=72)

class G:
    def __init__(self): self.l = []
    def __call__(self, s=""):
        for x in s.split("\n"): self.l.append(x)
    def label(self, n): self.l.append(n + ":")
    def srd(self, r, arg, size=None, off=0):
        p = KA[arg]
        if off: self(f"    s_add_u32 s{r}, s{p}, {off}\n    s_addc_u32 s{r+1}, s{p+1}, 0")
        else: self(f"    s_mov_b32 s{r}, s{p}\n    s_mov_b32 s{r+1}, s{p+1}")
        self(f"    s_mov_b32 s{r+2}, {SIZE[arg] if size is None else size}\n    s_mov_b32 s{r+3}, 0x20000")
    def ts(self, i):
        if TS: self(f"    s_memrealtime s[82:83]\n    s_waitcnt lgkmcnt(0)\n    s_mov_b32 s{84+i}, s82")
    def ts_flush(self):
        if not TS: return
        self("    s_waitcnt vmcnt(0) lgkmcnt(0)")
        self.ts(11)
        self(f"    s_add_u32 s4, s72, {TS_OFF}\n    s_addc_u32 s5, s73, 0\n    s_mov_b32 s6, 0x400000\n    s_mov_b32 s7, 0x20000")
        for i in range(12): self(f"    v_mov_b32 v{200+i}, s{84+i}")
        self("""    s_getreg_b32 s8, hwreg(HW_REG_XCC_ID)
    v_mov_b32 v212, s8
    s_getreg_b32 s8, hwreg(HW_REG_HW_ID)
    v_mov_b32 v213, s8
    v_mov_b32 v214, 0
    v_mov_b32 v215, 0
    s_lshl_b32 s9, s2, 3
    s_add_u32 s9, s9, s3
    s_lshl_b32 s9, s9, 6
    v_mov_b32 v216, s9
    s_mov_b64 exec, 1
    s_nop 4
    buffer_store_dwordx4 v[200:203], v216, s[4:7], 0 offen
    buffer_store_dwordx4 v[204:207], v216, s[4:7], 0 offen offset:16
    buffer_store_dwordx4 v[208:211], v216, s[4:7], 0 offen offset:32
    buffer_store_dwordx4 v[212:215], v216, s[4:7], 0 offen offset:48
    s_waitcnt vmcnt(0)""")

uid = [0]
def lab(p):
    uid[0] += 1
    return f"{p}{uid[0]}"

def poll(g, vaddr, vnonce, vtmp, srd, stmp, sleep=1):
    L = lab("poll")
    g(f"""    s_mov_b32 s{stmp}, 0
{L}:
    buffer_load_dword v{vtmp}, v{vaddr}, {srd}, 0 offen sc1
    s_waitcnt vmcnt(0)
    v_cmp_ne_u32 vcc, v{vtmp}, v{vnonce}
    s_nop 4
    s_cbranch_vccz {L}_ok
    s_add_u32 s{stmp}, s{stmp}, 1
    s_cmp_gt_u32 s{stmp}, 0x80000
    s_cbranch_scc1 {L}_ok
    s_sleep {sleep*PSL}
    s_branch {L}
{L}_ok:""")
def poll_tagged(g, vaddr, vflag, vtmp, stmp, vown_rec_addr, rec_off, sleep=1):
    L = lab("pt")
    g(f"""    s_mov_b32 s{stmp}, 0
{L}:
    buffer_load_dword v{vtmp}, v{vaddr}, {FL}, 0 offen offset:{0} nt
    s_waitcnt vmcnt(0)
    v_cmp_ne_u32 vcc, v{vtmp}, v{vflag}
    s_nop 4
    s_cbranch_vccz {L}_{'ok' if not FORCE_REC else 'glob'}
    s_add_u32 s{stmp}, s{stmp}, 1
    s_and_b32 s{stmp+1}, s{stmp}, 7
    s_cmp_eq_u32 s{stmp+1}, 0
    s_cbranch_scc1 {L}_glob
    s_sleep {sleep*PSL}
    s_branch {L}
{L}_glob:
    s_cmp_gt_u32 s{stmp}, 0x80000
    s_cbranch_scc1 {L}_ok
    v_subrev_u32 v{vtmp+1}, {LOC}, v{vaddr}
    buffer_load_dword v{vtmp}, v{vtmp+1}, {FL}, 0 offen sc1
    s_waitcnt vmcnt(0)
    v_xor_b32 v{vtmp+1}, v{vtmp}, v{vflag}
    v_and_b32 v{vtmp+1}, 0xfffffff1, v{vtmp+1}
    v_cmp_ne_u32 vcc, 0, v{vtmp+1}
    s_nop 4
    s_cbranch_vccnz {L}
    v_cmp_ne_u32 vcc, v{vtmp}, v{vflag}
    s_nop 4
    s_cbranch_{'vccz ' + L if not FORCE_REC else 'vccz ' + L + '_rec'}
{L}_rec:
    buffer_wbl2 sc1
    s_waitcnt vmcnt(0)
    v_add_u32 v{vtmp+1}, {rec_off}, v{vown_rec_addr}
    s_mov_b64 exec, 1
    buffer_store_dword v{vflag}, v{vtmp+1}, {FL}, 0 offen sc1
    s_mov_b64 exec, -1
    s_mov_b32 s{stmp}, 0
{L}_r2:
    v_add_u32 v{vtmp+1}, {rec_off - LOC}, v{vaddr}
    buffer_load_dword v{vtmp}, v{vtmp+1}, {FL}, 0 offen sc1
    s_waitcnt vmcnt(0)
    v_xor_b32 v{vtmp+1}, v{vtmp}, v{vflag}
    v_and_b32 v{vtmp+1}, 0xfffffff1, v{vtmp+1}
    v_cmp_ne_u32 vcc, 0, v{vtmp+1}
    s_nop 4
    s_cbranch_vccz {L}_r3
    s_add_u32 s{stmp}, s{stmp}, 1
    s_cmp_gt_u32 s{stmp}, 0x80000
    s_cbranch_scc1 {L}_r3
    s_sleep 2
    s_branch {L}_r2
{L}_r3:
    buffer_inv sc1
    s_waitcnt vmcnt(0)
{L}_ok:""")
def wave_polltag_or_spin(g, vaddr, vflag, vtmp, stmp, vown, rec_off, mbox):
    L = lab("wp")
    g(f"    s_cbranch_scc0 {L}_spin")
    poll_tagged(g, vaddr, vflag, vtmp, stmp, vown, rec_off)
    lds_set(g, mbox, vtmp)
    g(f"    s_branch {L}_done\n{L}_spin:")
    lds_wait(g, mbox, vtmp, 1, stmp)
    g(f"{L}_done:")
def lds_arrive(g, addr, vt):
    g(f"""    v_mov_b32 v{vt}, {addr}
    v_mov_b32 v{vt+1}, 1
    s_waitcnt lgkmcnt(0)
    s_mov_b64 exec, 1
    ds_add_u32 v{vt}, v{vt+1}
    s_mov_b64 exec, -1""")
def lds_wait(g, addr, vt, target, stmp):
    L = lab("spin")
    g(f"""    v_mov_b32 v{vt}, {addr}
    s_mov_b32 s{stmp+1}, 0
{L}:
    ds_read_b32 v{vt+1}, v{vt}
    s_waitcnt lgkmcnt(0)
    v_readfirstlane_b32 s{stmp}, v{vt+1}
    s_add_u32 s{stmp+1}, s{stmp+1}, 1
    s_cmp_gt_u32 s{stmp+1}, 0x1000000
    s_cbranch_scc1 {L}_ok
    s_cmp_ge_u32 s{stmp}, {target}
    s_cbranch_scc1 {L}_ok
    s_sleep {LSL}
    s_branch {L}
{L}_ok:""")
def lds_set(g, addr, vt):
    g(f"""    v_mov_b32 v{vt}, {addr}
    v_mov_b32 v{vt+1}, 1
    ds_write_b32 v{vt}, v{vt+1}""")
def lds_last(g, addr, vt, stmp):
    g(f"""    v_mov_b32 v{vt}, {addr}
    v_mov_b32 v{vt+1}, 1
    s_mov_b64 exec, 1
    ds_add_rtn_u32 v{vt+1}, v{vt}, v{vt+1}
    s_waitcnt lgkmcnt(0)
    s_mov_b64 exec, -1
    v_readfirstlane_b32 s{stmp}, v{vt+1}
    s_cmp_eq_u32 s{stmp}, 3""")
def wave_poll_or_spin(g, is_poller_scc, vaddr, vnonce, vtmp, srd, stmp, mbox, sleep=1):
    L = lab("wp")
    g(f"    s_cbranch_scc0 {L}_spin")
    poll(g, vaddr, vnonce, vtmp, srd, stmp, sleep)
    lds_set(g, mbox, vtmp)
    g(f"    s_branch {L}_done\n{L}_spin:")
    lds_wait(g, mbox, vtmp, 1, stmp)
    g(f"{L}_done:")

K, V_, SH, UT, SK_, Y2, Q, OUT, FL, DBG = "s[4:7]", "s[8:11]", "s[12:15]", "s[16:19]", "s[20:23]", "s[24:27]", "s[28:31]", "s[32:35]", "s[44:47]", "s[48:51]"
X, G1 = "s[4:7]", "s[8:11]"
KR, VR, SR = 20, 42, 60
ADDR = [5, 9, 10, 11]

def a_early(g):
    g("""    s_and_b32 s74, s2, 7
    s_lshr_b32 s75, s2, 3
    s_lshl_b32 s74, s74, 1
    s_lshr_b32 s76, s75, 4
    s_add_u32 s74, s74, s76             ; ct
    s_and_b32 s75, s75, 15
    s_lshl_b32 s36, s75, 7              ; rt*128
    s_lshl_b32 s37, s74, 6              ; ct*64
    v_lshrrev_b32 v1, 4, v0
    v_and_b32 v2, 15, v0
    v_lshl_add_u32 v3, v1, 3, s36       ; row0
    v_lshl_add_u32 v4, v2, 2, s37       ; ch0
    v_lshlrev_b32 v5, 11, v3
    v_lshl_add_u32 v5, v4, 1, v5
    v_subrev_u32 v6, 6144, v5
    v_subrev_u32 v7, 4096, v5
    v_subrev_u32 v8, 2048, v5
    v_add_u32 v9, 4096, v5
    v_add_u32 v10, 8192, v5
    v_add_u32 v11, 12288, v5
    v_lshlrev_b32 v12, 3, v4
    s_mov_b32 s6, 0x400000
    s_mov_b32 s7, 0x20000
    s_mov_b32 s10, 0x400000
    s_mov_b32 s11, 0x20000
    s_waitcnt lgkmcnt(0)
    s_mov_b32 s4, s54
    s_mov_b32 s5, s55
    s_mov_b32 s8, s56
    s_mov_b32 s9, s57""")
    for i, ad in enumerate((6, 7, 8)):
        g(f"    buffer_load_dwordx2 {vr(KR+2*i,2)}, v{ad}, {K}, 0 offen{NT}")
    for r in range(8):
        off = " offset:2048" if r & 1 else ""
        g(f"    buffer_load_dwordx2 {vr(KR+6+2*r,2)}, v{ADDR[r>>1]}, {K}, 0 offen{off}{NT}")
    for r in range(8):
        off = " offset:2048" if r & 1 else ""
        g(f"    buffer_load_dwordx2 {vr(VR+2*r,2)}, v{ADDR[r>>1]}, {V_}, 0 offen{off}{NT}")
    g.srd(12, "shift")
    g(f"    buffer_load_dwordx4 {vr(SR,4)}, v12, {SH}, 0 offen")
    g(f"    buffer_load_dwordx4 {vr(SR+4,4)}, v12, {SH}, 0 offen offset:16")

def a_main(g):
    g.srd(20, "ssmk")
    g(f"""    s_lshl_b32 s38, s75, 2
    s_add_u32 s38, s38, s37
    s_add_u32 s38, s38, s3
    s_mul_i32 s39, s3, {CONV_WSTRIDE}   ; LB
    s_lshl_b32 s40, s38, 12             ; ch*4096
    v_and_b32 v140, 63, v0              ; lane
    v_lshlrev_b32 v141, 4, v140         ; lane*16
    s_add_u32 m0, s39, {CONV_KOFF + 160}
    s_nop 0""")
    for i in range(4):
        g(f"    buffer_load_dwordx4 v141, {SK_}, s40 offen offset:{1024*i}{NT} lds")
    NVM = 4
    g.srd(16, "ws", MB4, UT_OFF); g.srd(44, "ws", FL_SIZE, FL_OFF)
    g(f"""    s_lshl_b32 s41, s38, 1
    s_and_b32 s41, s41, 0xfffffffc
    s_load_dword s42, s[62:63], s41      ; D pair
    s_load_dword s43, s[60:61], s40      ; k[0],k[1]
    v_mov_b32 v144, 0
    v_mov_b32 v145, 0
    v_mov_b32 v146, 0
    v_mov_b32 v147, 0
    v_min_u32 v148, 5, v140
    v_lshl_add_u32 v148, v148, 4, s39
    ds_write_b128 v148, v[144:147]
    v_min_u32 v148, 9, v140
    v_lshl_add_u32 v148, v148, 4, s39
    ds_write_b128 v148, v[144:147] offset:{CONV_KOFF}
    s_mov_b32 s76, 0xffff0000
    s_barrier""")
    g.ts(1)
    SK, KF, VF = 70, 88, 132
    def unpack(dst, src):
        for p in range(2):
            g(f"    v_lshlrev_b32 v{dst+2*p}, 16, v{src+p}")
            g(f"    v_and_b32 v{dst+2*p+1}, s76, v{src+p}")
    for r in range(11):
        g(f"    s_waitcnt vmcnt({24 - r})")
        unpack(KF + 4 * r, KR + 2 * r)
    g(f"    s_waitcnt vmcnt({NVM})")
    for p in range(2):
        for e in range(2):
            c = 2 * p + e
            d0, d1 = SR + 2 * c, SR + 2 * c + 1
            g(f"    v_lshlrev_b32 v{SK+0+2*p+e}, 16, v{d0}")
            g(f"    v_and_b32 v{SK+4+2*p+e}, s76, v{d0}")
            g(f"    v_lshlrev_b32 v{SK+8+2*p+e}, 16, v{d1}")
            g(f"    v_and_b32 v{SK+12+2*p+e}, s76, v{d1}")
    g.ts(2)
    g("""    v_lshlrev_b32 v13, 12, v4
    v_lshl_add_u32 v13, v3, 1, v13
    s_mov_b32 s77, 4096
    s_mov_b32 s78, 8192
    s_mov_b32 s79, 12288""")
    for r in range(8):
        vf = VF + 4 * (r & 1)
        unpack(vf, VR + 2 * r)
        for p in range(2):
            t = KF + 4 * r + 2 * p
            kk = lambda rr: vr(KF + 4 * rr + 2 * p, 2)
            sk = lambda j: vr(SK + 4 * j + 2 * p, 2)
            g(f"    v_pk_mul_f32 {vr(t,2)}, {kk(r)}, {sk(3)}")
            g(f"    v_pk_fma_f32 {vr(t,2)}, {kk(r+1)}, {sk(2)}, {vr(t,2)}")
            g(f"    v_pk_fma_f32 {vr(t,2)}, {kk(r+2)}, {sk(1)}, {vr(t,2)}")
            g(f"    v_pk_fma_f32 {vr(t,2)}, {kk(r+3)}, {sk(0)}, {vr(t,2)}")
            g(f"    v_pk_mul_f32 {vr(t,2)}, {vr(t,2)}, {vr(vf+2*p,2)}")
    OUTR = 20
    soff = ["0", "s77", "s78", "s79"]
    for c in range(4):
        p, e = c >> 1, c & 1
        for j in range(4):
            u0 = KF + 4 * (2 * j) + 2 * p + e
            u1 = KF + 4 * (2 * j + 1) + 2 * p + e
            g(f"    v_cvt_pk_bf16_f32 v{OUTR+4*c+j}, v{u0}, v{u1}")
        g(f"    buffer_store_dwordx4 {vr(OUTR+4*c,4)}, v13, {UT}, {soff[c]} offen{SCA}")
    g(f"""    v_lshrrev_b32 v9, 4, v140            ; hh
    v_bfe_u32 v10, v140, 2, 2            ; r
    v_and_b32 v11, 3, v140               ; cc
    v_lshlrev_b32 v14, 5, v11
    v_lshl_add_u32 v14, v9, 6, v14
    v_lshl_add_u32 v14, v10, 3, v14
    v_add_u32 v14, s39, v14              ; vVaddr
    v_lshlrev_b32 v15, 3, v11
    v_lshlrev_b32 v16, 6, v9
    v_sub_u32 v15, v15, v16
    v_lshlrev_b32 v16, 3, v10
    v_sub_u32 v15, v15, v16
    s_add_u32 s77, s39, {CONV_KOFF + 224}
    v_add_u32 v15, s77, v15              ; vWaddr
    s_and_b32 s77, s38, 1
    s_cmp_eq_u32 s77, 0
    s_cselect_b32 s77, 16, 0
    s_waitcnt lgkmcnt(0)
    s_lshl_b32 s42, s42, s77
    s_and_b32 s42, s42, 0xffff0000       ; D as f32
    s_lshl_b32 s43, s43, 16              ; k0 as f32
    v_mov_b32 v16, s42
    v_add_f32 v16, s43, v16
    v_cvt_pk_bf16_f32 v16, v16, v16
    v_mov_b32 v17, s39
    s_lshl_b32 s77, s74, 8
    v_and_b32 v18, 15, v140
    v_lshlrev_b32 v142, 2, v18
    v_add_u32 v142, s77, v142
    v_add_u32 v142, {LOC}, v142
    s_lshl_b32 s79, s75, 2
    s_add_u32 s79, s79, s77
    v_mov_b32 v18, s79
    s_waitcnt vmcnt(0)
    ds_write_b16 v17, v16 offset:{CONV_KOFF + 160}""")
    g.ts(3)
    lds_wait(g, SY_NONCE, 12, 1, 80)
    g("""    s_getreg_b32 s81, hwreg(HW_REG_XCC_ID)
    s_and_b32 s81, s81, 7
    s_lshl_b32 s81, s81, 1
    v_and_b32 v149, 0xfffffff1, v13
    v_or_b32 v149, s81, v149""")
    L = lab("f1")
    lds_last(g, SY_A1, 12, 80)
    g(f"""    s_cbranch_scc0 {L}
    v_add_u32 v12, {LOC}, v18
    s_mov_b64 exec, 1
    buffer_store_dword v149, v12, {FL}, 0 offen
    buffer_store_dword v149, v18, {FL}, 0 offen sc1
    s_mov_b64 exec, -1
{L}:
    s_cmp_eq_u32 s3, 0""")
    wave_polltag_or_spin(g, 142, 149, 12, 80, 18, MR1 - MB1, SY_MF1)
    g.ts(4)
    g(f"    s_add_u32 m0, s39, 96")
    g("    s_nop 0")
    for i in range(4):
        g(f"    buffer_load_dwordx4 v141, {UT}, s40 offen offset:{1024*i}{SCA} lds")
    g.ts(10)
    g.srd(24, "ws", MB4, Y2_OFF); g.srd(28, "q"); g.srd(32, "out")
    if PRIO: g(f"    s_setprio {PRIO}")
    lane, vV, vW = 140, 14, 15
    V = 20; W = 84; ACC = 100; NW = 4
    A2 = [228, 229]; A1 = [230, 231]; Y = [232, 233]; Z = 234; PK = 235; YA = 236
    NONCE = 237
    g(f"    v_mov_b32 v{NONCE}, v149")
    g(f"    v_add_u32 v238, {MB2}, v142")
    g(f"    v_mov_b32 v239, v141")
    g(f"    v_mov_b32 v240, v3")
    g(f"    v_mov_b32 v241, v4")
    g(f"    v_add_u32 v242, {MB2}, v18")
    g(f"    v_mov_b32 v{Z}, 0")
    g(f"    v_lshl_add_u32 v{YA}, v{lane}, 1, s39")
    g("    s_waitcnt vmcnt(0)")
    g.ts(5)
    start_idx = len(g.l)
    def loadV(J):
        for j in range(2):
            g(f"    ds_read_b64_tr_b16 {vr(V+4*J+2*j,2)}, v{vV} offset:{256*J + 32*j}")
    def loadW(gg):
        w = W + 4 * (gg % NW)
        for j in range(2):
            g(f"    ds_read_b64_tr_b16 {vr(w+2*j,2)}, v{vW} offset:{128*gg + 32*(1-j)}")
    loadW(0); loadV(0); loadV(1); loadW(1); loadV(2); loadV(3); loadV(4)
    started = set()
    def reduce_tile(T):
        r0, r1, r2, r3 = [ACC + 4 * T + i for i in range(4)]
        p3 = (ACC + 4 * (T - 1) + 3) if T else Z
        a2, a2p = A2[T & 1], (A2[(T - 1) & 1] if T else Z)
        a1, a1p = A1[T & 1], (A1[(T - 1) & 1] if T else Z)
        y = Y[T & 1]
        ops = [
            (0, f"    v_add_f32_dpp v{a2}, v{p3}, v{r2} wave_ror:1 row_mask:0x1 bank_mask:0x1"),
            (0, f"    v_add_f32_dpp v{a1}, v{a2p}, v{r1} wave_ror:1 row_mask:0x1 bank_mask:0x1"),
            (1, f"    v_add_f32_dpp v{y}, v{a1p}, v{r0} wave_ror:1 row_mask:0x1 bank_mask:0x1"),
            (1, f"    v_add_f32_dpp v{a2}, v{r3}, v{r2} wave_shr:1 row_mask:0xf bank_mask:0xf"),
            (3, f"    v_add_f32_dpp v{a1}, v{a2}, v{r1} wave_shr:1 row_mask:0xf bank_mask:0xf"),
            (5, f"    v_add_f32_dpp v{y}, v{a1}, v{r0} wave_shr:1 row_mask:0xf bank_mask:0xf"),
        ]
        if T & 1:
            ops += [(6, f"    v_cvt_pk_bf16_f32 v{PK}, v{Y[0]}, v{Y[1]}"),
                    (7, f"    ds_write_b16 v{YA}, v{PK} offset:{128*(T-1)}"),
                    (7, f"    ds_write_b16_d16_hi v{YA}, v{PK} offset:{128*T}")]
        return ops
    pending = []
    for gg in range(32):
        Js = list(range((31 - gg) // 2 + 1))
        for n, J in enumerate(Js):
            T = gg + 2 * J
            if gg == 0:
                if J + 5 < 16: loadV(J + 5)
                if J == 11: loadW(2)
                if J == 13: loadW(3)
                g(f"    s_waitcnt lgkmcnt(WAITFOR:v{vV} offset:{256*J + 32})")
            elif n == 0:
                g(f"    s_waitcnt lgkmcnt(WAITFOR:v{vW} offset:{128*gg})")
            c = vr(ACC + 4 * T, 4) if T in started else "0"
            started.add(T)
            g(f"    v_mfma_f32_16x16x32_bf16 {vr(ACC+4*T,4)}, {vr(V+4*J,4)}, {vr(W+4*(gg%NW),4)}, {c}")
            if gg > 0 and n == 0 and gg + 3 < 32: loadW(gg + 3)
            while pending and pending[0][0] + 1 <= n: g(pending.pop(0)[1])
        while pending: g(pending.pop(0)[1])
        pending = reduce_tile(gg)
    while pending: g(pending.pop(0)[1])
    q = []
    for i in range(start_idx, len(g.l)):
        s = g.l[i].strip()
        if s.startswith("ds_"): q.append(s)
        elif s.startswith("s_waitcnt") and "WAITFOR:" in s:
            tag = s.split("WAITFOR:")[1].rstrip(")")
            cand = [k for k, t in enumerate(q) if t.endswith(tag)]
            if not cand:
                g.l[i] = "    s_nop 0"; continue
            idx = max(cand); n = len(q) - 1 - idx
            assert n <= 15, n
            g.l[i] = f"    s_waitcnt lgkmcnt({n})"
            q = q[idx + 1:]
    g.ts(6)
    if PRIO: g("    s_setprio 0")
    g(f"""    s_waitcnt lgkmcnt(0)
    v_add_u32 v17, s39, v239""")
    for i in range(4):
        g(f"    ds_read_b128 {vr(20+4*i,4)}, v17 offset:{1024*i}")
    for i in range(4):
        g(f"    s_waitcnt lgkmcnt({3-i})")
        g(f"    buffer_store_dwordx4 {vr(20+4*i,4)}, v239, {Y2}, s40 offen offset:{1024*i}{SCA}")
    g(f"""    v_lshlrev_b32 v5, 11, v240
    v_lshl_add_u32 v5, v241, 1, v5
    v_add_u32 v9, 4096, v5
    v_add_u32 v10, 8192, v5
    v_add_u32 v11, 12288, v5""")
    QR, YR = 40, 60
    for r in range(8):
        off = " offset:2048" if r & 1 else ""
        g(f"    buffer_load_dwordx2 {vr(QR+2*r,2)}, v{ADDR[r>>1]}, {Q}, 0 offen{off}{NT}")
    L = lab("e2")
    g(f"""    v_lshlrev_b32 v13, 12, v241
    v_lshl_add_u32 v13, v240, 1, v13
    v_lshlrev_b32 v6, 12, v240
    v_lshl_add_u32 v6, v241, 1, v6
    s_waitcnt vmcnt(8)""")
    lds_last(g, SY_A2, 7, 80)
    g(f"""    s_cbranch_scc0 {L}
    v_add_u32 v7, {LOC}, v242
    s_mov_b64 exec, 1
    buffer_store_dword v{NONCE}, v7, {FL}, 0 offen
    buffer_store_dword v{NONCE}, v242, {FL}, 0 offen sc1
    s_mov_b64 exec, -1
{L}:""")
    g.ts(7)
    g("    s_cmp_eq_u32 s3, 0")
    wave_polltag_or_spin(g, 238, NONCE, 7, 80, 242, MR2 - MB2, SY_MF2)
    g.ts(8)
    g("""    s_mov_b32 s77, 4096
    s_mov_b32 s78, 8192
    s_mov_b32 s79, 12288""")
    for c in range(4):
        g(f"    buffer_load_dwordx4 {vr(YR+4*c,4)}, v13, {Y2}, {soff[c]} offen{SCA}")
    g("    s_waitcnt vmcnt(0)")
    g.ts(9)
    T = 80
    for r in range(8):
        t = T + 8 * (r & 1)
        for c in range(4):
            qs = QR + 2 * r + (c >> 1)
            ys = YR + 4 * c + (r >> 1)
            g(f"    v_lshlrev_b32 v{t+c}, 16, v{qs}" if c % 2 == 0 else f"    v_and_b32 v{t+c}, s76, v{qs}")
            g(f"    v_lshlrev_b32 v{t+4+c}, 16, v{ys}" if r % 2 == 0 else f"    v_and_b32 v{t+4+c}, s76, v{ys}")
        g(f"    v_pk_mul_f32 {vr(t,2)}, {vr(t,2)}, {vr(t+4,2)}")
        g(f"    v_pk_mul_f32 {vr(t+2,2)}, {vr(t+2,2)}, {vr(t+6,2)}")
        o = 100 + 2 * r
        g(f"    v_cvt_pk_bf16_f32 v{o}, v{t}, v{t+1}")
        g(f"    v_cvt_pk_bf16_f32 v{o+1}, v{t+2}, v{t+3}")
        if r: g(f"    s_mov_b32 s80, {4096*r}")
        g(f"    buffer_store_dwordx2 {vr(o,2)}, v6, {OUT}, {'s80' if r else '0'} offen")
    g.ts_flush()
    g("    s_endpgm")

def b_early(g):
    g(f"""    s_sub_u32 s22, s3, 4
    s_and_b32 s20, s2, 7                 ; g
    s_lshr_b32 s21, s2, 3
    v_and_b32 v2, 63, v0                 ; lane
    s_lshl_b32 s23, s20, 2
    s_add_u32 s23, s23, s22              ; s1 = 4g + w
    s_lshl_b32 s24, s22, 12
    s_add_u32 s24, s24, {BREG}
    v_lshrrev_b32 v3, 2, v2
    v_and_b32 v4, 3, v2
    v_lshrrev_b32 v5, 5, v2
    v_lshlrev_b32 v5, 1, v5
    v_xor_b32 v4, v4, v5
    v_lshlrev_b32 v6, 16, v3
    v_lshl_add_u32 v6, v4, 4, v6
    s_lshl_b32 s25, s23, 11
    s_lshl_b32 s26, s21, 6
    s_add_u32 s25, s25, s26
    v_add_u32 v6, s25, v6
    s_mov_b32 s6, 0x400000
    s_mov_b32 s7, 0x20000
    s_mov_b32 m0, s24
    s_waitcnt lgkmcnt(0)
    s_mov_b32 s4, s64
    s_mov_b32 s5, s65""")
    for i in range(4):
        if i:
            g(f"    s_add_u32 m0, s24, {1024*i}")
            g(f"    s_mov_b32 s27, {i << 20}")
        g(f"    buffer_load_dwordx4 v6, {X}, {'s27' if i else '0'} offen{NT} lds")

def b_main(g):
    g.srd(48, "dbg")
    L = lab("nonce")
    g(f"""    s_or_b32 s12, s2, s22
    s_cmp_eq_u32 s12, 0
    s_cbranch_scc0 {L}
    s_memrealtime s[12:13]
    s_waitcnt lgkmcnt(0)
    s_or_b32 s12, s12, 1
    v_mov_b32 v242, s12
    v_mov_b32 v243, 0
    s_mov_b64 exec, 1
    buffer_store_dword v242, v243, {DBG}, 0 offen sc1
    s_mov_b64 exec, -1
{L}:""")
    L = lab("init")
    g(f"""    s_cmp_eq_u32 s22, 0
    s_cbranch_scc0 {L}
    v_and_b32 v7, 15, v2
    v_lshlrev_b32 v7, 2, v7
    v_add_u32 v7, {SYNC}, v7
    v_mov_b32 v8, 0
    ds_write_b32 v7, v8
    s_waitcnt lgkmcnt(0)
{L}:
    v_mov_b32 v243, 0
    s_barrier""")
    g.srd(8, "ws", MB4, G1_OFF); g.srd(32, "out"); g.srd(44, "ws", FL_SIZE, FL_OFF)
    g.ts(1)
    g(f"""    v_and_b32 v7, 15, v2                 ; m
    v_lshrrev_b32 v8, 4, v2              ; h
    v_lshrrev_b32 v9, 1, v7
    v_and_b32 v10, 1, v7                 ; part
    v_lshlrev_b32 v11, 8, v8
    v_add_u32 v11, s23, v11              ; s1 + 256h
    v_cvt_f32_u32 v11, v11
    v_mul_f32 v11, 0x3a000000, v11       ; /2048
    v_cvt_f32_u32 v12, v10
    v_mul_f32 v12, 0x3e800000, v12       ; part/4""")
    AF = 32
    for mt in range(4):
        g(f"    v_add_u32 v13, {8*mt}, v9")
        g("    v_cvt_f32_u32 v13, v13")
        if mt == 0:
            g("""    v_cmp_eq_u32 vcc, 1, v7
    v_mov_b32 v15, 0x42000000
    v_cndmask_b32 v13, v13, v15, vcc
    v_cvt_f32_u32 v15, s23
    v_mul_f32 v15, 0xbc800000, v15
    v_cndmask_b32 v14, v12, v15, vcc
    v_fma_f32 v20, v13, v11, v14""")
        else:
            g("    v_fma_f32 v20, v13, v11, v12")
        g("    v_mul_f32 v17, 0x3c800000, v13")
        g("    v_mul_f32 v18, 0x41c80000, v17")
        for ks in range(2):
            if ks: g("    v_add_f32 v20, v28, v18")
            for i in range(1, 8): g(f"    v_add_f32 v{20+i}, v{19+i}, v17")
            g("    v_mov_b32 v28, v27")
            for i in range(8): g(f"    v_cos_f32 v{20+i}, v{20+i}")
            for j in range(4):
                g(f"    v_cvt_pk_bf16_f32 v{AF + 8*mt + 4*ks + j}, v{20+2*j}, v{21+2*j}")
    L = lab("nld")
    g(f"""    s_cmp_eq_u32 s22, 0
    s_cbranch_scc0 {L}
    buffer_load_dword v122, v243, {DBG}, 0 offen
{L}:
    v_lshrrev_b32 v18, 2, v7
    v_and_b32 v19, 3, v7
    v_lshl_add_u32 v18, v8, 3, v18
    v_lshlrev_b32 v18, 6, v18
    v_lshl_add_u32 v18, v19, 3, v18
    v_add_u32 v18, s24, v18
    v_and_b32 v19, 1, v8
    v_lshlrev_b32 v19, 5, v19
    v_add_u32 v28, v18, v19
    v_xor_b32 v19, 32, v19
    v_add_u32 v29, v18, v19
    s_waitcnt vmcnt(0)""")
    g.ts(2)
    BF = 64
    for nt in range(2):
        for ks in range(2):
            for j in range(2):
                d = BF + 8 * nt + 4 * ks + 2 * j
                g(f"    ds_read_b64_tr_b16 {vr(d,2)}, v{28+nt} offset:{2048*ks + 256*j}")
    AC = 80
    L = lab("nz")
    g(f"""    v_lshlrev_b32 v18, 6, v8
    v_add_u32 v18, v18, v7
    v_lshlrev_b32 v18, 4, v18
    s_lshl_b32 s27, s22, 2
    s_add_u32 s27, s27, {EOFF}
    v_add_u32 v18, s27, v18
    s_cmp_eq_u32 s22, 0
    s_cbranch_scc0 {L}_done
    s_mov_b32 s13, 0
{L}:
    v_readfirstlane_b32 s12, v122
    s_cmp_lg_u32 s12, 0
    s_cbranch_scc1 {L}_ok
    s_add_u32 s13, s13, 1
    s_cmp_gt_u32 s13, 0x80000
    s_cbranch_scc1 {L}_ok
    s_sleep 1
    buffer_load_dword v122, v243, {DBG}, 0 offen sc1
    s_waitcnt vmcnt(0)
    s_branch {L}
{L}_ok:
    v_mov_b32 v19, {SY_NONCE}
    ds_write_b32 v19, v122
{L}_done:
    s_waitcnt lgkmcnt(0)""")
    for ks in range(2):
        for mt in range(4):
            for nt in range(2):
                d = AC + 8 * mt + 4 * nt
                c = "0" if ks == 0 else vr(d, 4)
                g(f"    v_mfma_f32_16x16x32_bf16 {vr(d,4)}, {vr(AF+8*mt+4*ks,4)}, {vr(BF+8*nt+4*ks,4)}, {c}")
    for mt in range(4):
        for nt in range(2):
            d = AC + 8 * mt + 4 * nt
            t = 20 + 2 * ((2 * mt + nt) % 4)
            g(f"    v_cvt_pk_bf16_f32 v{t}, v{d}, v{d+1}")
            g(f"    v_cvt_pk_bf16_f32 v{t+1}, v{d+2}, v{d+3}")
            g(f"    ds_write_b32 v18, v{t} offset:{4096*mt + 256*nt}")
            g(f"    ds_write_b32 v18, v{t+1} offset:{4096*mt + 256*nt + 512}")
    g(f"""    v_lshlrev_b32 v18, 4, v0
    v_add_u32 v18, {EOFF}, v18
    v_lshrrev_b32 v19, 5, v0
    v_lshlrev_b32 v19, 17, v19
    v_and_b32 v20, 31, v0
    v_lshl_add_u32 v19, v20, 4, v19
    s_lshl_b32 s25, s20, 14
    s_lshl_b32 s26, s21, 9
    s_add_u32 s25, s25, s26
    v_add_u32 v19, s25, v19""")
    lds_arrive(g, SY_BX, 30)
    lds_wait(g, SY_BX, 30, 4, 12)
    for j in range(4):
        g(f"    ds_read_b128 {vr(32+4*j,4)}, v18 offset:{4096*j}")
    g(f"    v_mov_b32 v21, {SY_NONCE}\n    ds_read_b32 v122, v21")
    for j in range(4):
        g(f"    s_mov_b32 s27, {j << 20}")
        g(f"    s_waitcnt lgkmcnt({4-j})")
        g(f"    buffer_store_dwordx4 {vr(32+4*j,4)}, v19, {G1}, s27 offen{SC}")
    g(f"""    s_and_b32 s14, s2, 7
    s_lshr_b32 s15, s2, 3
    s_lshl_b32 s14, s14, 1
    s_lshr_b32 s16, s15, 4
    s_add_u32 s14, s14, s16
    s_and_b32 s15, s15, 15               ; i
    s_and_b32 s20, s2, 7
    s_lshr_b32 s21, s2, 6
    s_lshl_b32 s21, s21, 3
    s_add_u32 s20, s20, s21              ; slot
    s_lshr_b32 s21, s2, 3
    s_and_b32 s21, s21, 7                ; j
    v_and_b32 v3, 15, v2
    v_lshrrev_b32 v4, 4, v2
    v_lshlrev_b32 v5, 14, v4
    v_lshl_add_u32 v5, v3, 4, v5
    s_lshl_b32 s23, s20, 17
    s_lshl_b32 s24, s22, 12
    s_add_u32 s23, s23, s24
    v_add_u32 v5, s23, v5
    v_add_u32 v6, 0x10000, v5
    s_waitcnt vmcnt(0) lgkmcnt(0)""")
    g.ts(3)
    L = lab("b1sig")
    lds_last(g, SY_B1, 30, 12)
    g(f"""    s_cbranch_scc0 {L}
    s_lshl_b32 s12, s14, 8
    s_lshl_b32 s13, s15, 2
    s_add_u32 s12, s12, s13
    s_add_u32 s12, s12, {MBL}
    v_mov_b32 v30, s12
    s_mov_b64 exec, 1
    buffer_store_dword v122, v30, {FL}, 0 offen sc1
    s_mov_b64 exec, -1
{L}:""")
    g(f"""    v_lshrrev_b32 v7, 1, v3              ; tl
    v_and_b32 v8, 1, v3                  ; part
    s_lshl_b32 s25, s21, 2
    s_cmp_eq_u32 s20, 0
    s_cselect_b32 s26, 1, 0
    s_cmp_ge_u32 s21, 4
    s_cselect_b32 s27, s26, 0
    s_cmp_eq_u32 s21, 0
    s_cselect_b32 s28, s26, 0
    s_and_b32 s29, s25, 15
    s_cmp_eq_u32 s27, 1
    s_cselect_b32 s25, s29, s25
    v_add_u32 v9, s25, v7
    v_cmp_eq_u32 vcc, 4, v7
    v_mov_b32 v10, 16
    v_cndmask_b32 v9, v9, v10, vcc
    v_cvt_f32_u32 v9, v9
    v_mul_f32 v9, {fl(1/32)}, v9
    v_mov_b32 v10, {fl(1/64)}
    s_cmp_eq_u32 s27, 1
    s_cselect_b32 s30, 1.0, 0
    v_fma_f32 v9, s30, v10, v9
    v_cvt_f32_u32 v10, v8
    v_mul_f32 v10, {fl(0.25)}, v10
    s_cselect_b32 s31, 0, {fl(-0.25)}
    v_add_f32 v11, s31, v10
    s_lshl_b32 s29, s28, 1
    s_add_u32 s29, s29, 8
    v_cmp_gt_u32 vcc, s29, v3
    v_cndmask_b32 v12, 0, 1.0, vcc
    s_cmp_eq_u32 s27, 1
    s_cselect_b32 s30, 0, 1.0
    v_mul_f32 v13, s30, v12
    s_sub_u32 s29, s26, s27
    s_cmp_eq_u32 s29, 1
    s_cselect_b32 s30, 0, 1.0
    v_mul_f32 v14, s30, v12
    v_lshlrev_b32 v15, 2, v4
    v_cvt_f32_u32 v15, v15""")
    BC = 16
    for ks in range(2):
        for i in range(8):
            t = 24 + i
            g(f"    v_add_f32 v{t}, {fl(16*ks + (i>>1))}, v15")
            g(f"    v_fma_f32 v{t}, v{t}, v9, v{10 if i % 2 == 0 else 11}")
        for i in range(8): g(f"    v_cos_f32 v{24+i}, v{24+i}")
        for i in range(8): g(f"    v_mul_f32 v{24+i}, v{24+i}, v{13 if i % 2 == 0 else 14}")
        for x in range(4): g(f"    v_cvt_pk_bf16_f32 v{BC+4*ks+x}, v{24+2*x}, v{25+2*x}")
    L = lab("lead")
    g(f"""    s_or_b32 s12, s15, s22
    s_cmp_eq_u32 s12, 0
    s_cbranch_scc0 {L}
    s_lshl_b32 s12, s14, 8
    s_add_u32 s12, s12, {MBL}
    v_lshlrev_b32 v123, 2, v3
    v_add_u32 v123, s12, v123""")
    poll(g, 123, 122, 124, FL, 16)
    g(f"""    v_and_b32 v123, 7, v2
    v_lshlrev_b32 v123, 8, v123
    s_lshl_b32 s12, s14, 2
    s_add_u32 s12, s12, {MBG}
    v_add_u32 v123, s12, v123
    s_mov_b64 exec, 0xff
    buffer_store_dword v122, v123, {FL}, 0 offen sc1
    s_mov_b64 exec, -1""")
    g(f"{L}:")
    g("""    v_and_b32 v32, 31, v2
    v_lshrrev_b32 v33, 5, v2
    v_cvt_f32_u32 v34, v32
    v_lshlrev_b32 v35, 2, v33
    v_cvt_f32_u32 v35, v35""")
    g(f"    v_mul_f32 v36, {fl(1/32)}, v34")
    g(f"    v_mul_f32 v37, {fl(1/1024)}, v34")
    CF, SF, NSF, NCF = 40, 48, 56, 64
    for ks in range(2):
        for i in range(8):
            d = (i & 3) + 8 * (2 * ks + (i >> 2))
            g(f"    v_add_f32 v{24+i}, {fl(d)}, v35")
            g(f"    v_mul_f32 v{24+i}, v{24+i}, v36")
        for i in range(8): g(f"    v_sin_f32 v{72+i}, v{24+i}")
        for i in range(8): g(f"    v_cos_f32 v{24+i}, v{24+i}")
        for x in range(4):
            g(f"    v_cvt_pk_bf16_f32 v{CF+4*ks+x}, v{24+2*x}, v{25+2*x}")
            g(f"    v_cvt_pk_bf16_f32 v{SF+4*ks+x}, v{72+2*x}, v{73+2*x}")
    for x in range(8):
        g(f"    v_xor_b32 v{NSF+x}, 0x80008000, v{SF+x}")
        g(f"    v_xor_b32 v{NCF+x}, 0x80008000, v{CF+x}")
    TC, TS_ = 72, 88
    for rI in range(16):
        d = (rI & 3) + 8 * (rI >> 2)
        g(f"    v_add_f32 v{TC+rI}, {fl(d)}, v35")
        g(f"    v_mul_f32 v{TC+rI}, v{TC+rI}, v37")
    for rI in range(16): g(f"    v_sin_f32 v{TS_+rI}, v{TC+rI}")
    for rI in range(16): g(f"    v_cos_f32 v{TC+rI}, v{TC+rI}")
    g(f"""    v_min_u32 v24, 10, v3
    v_mul_u32_u24 v24, {FSTRIDE}, v24
    v_lshl_add_u32 v24, v4, 3, v24
    s_lshl_b32 s29, s22, 9
    s_add_u32 s29, s29, {BREG}
    v_add_u32 v24, s29, v24
    s_and_b32 s12, s2, 7
    s_lshl_b32 s12, s12, 8
    s_add_u32 s12, s12, {MBG}
    v_lshlrev_b32 v123, 2, v3
    v_add_u32 v123, s12, v123""")
    g.ts(4)
    if NOB2:
        g.ts_flush(); g("    s_endpgm")
    g("    s_cmp_eq_u32 s22, 0")
    wave_poll_or_spin(g, None, 123, 122, 124, FL, 16, SY_MG)
    g.ts(5)
    GF = 128
    for t in range(16):
        g(f"    buffer_load_dwordx4 {vr(GF+8*t,4)}, v5, {G1}, 0 offen offset:{256*t}{SC}")
        g(f"    buffer_load_dwordx4 {vr(GF+8*t+4,4)}, v6, {G1}, 0 offen offset:{256*t}{SC}")
    for t in range(16):
        d = 104 + 4 * (t % 4)
        g(f"    s_waitcnt vmcnt({30 - 2*t})")
        g(f"    v_mfma_f32_16x16x32_bf16 {vr(d,4)}, {vr(GF+8*t,4)}, {vr(BC,4)}, 0")
        g(f"    v_mfma_f32_16x16x32_bf16 {vr(d,4)}, {vr(GF+8*t+4,4)}, {vr(BC+4,4)}, {vr(d,4)}")
        if t >= 2:
            tp = t - 2; dp = 104 + 4 * (tp % 4); pk = 120 if tp % 2 == 0 else 126
            g(f"    v_cvt_pk_bf16_f32 v{pk}, v{dp}, v{dp+1}")
            g(f"    v_cvt_pk_bf16_f32 v{pk+1}, v{dp+2}, v{dp+3}")
            g(f"    ds_write_b64 v24, {vr(pk,2)} offset:{32*tp}")
    for tp in (14, 15):
        dp = 104 + 4 * (tp % 4); pk = 120 if tp % 2 == 0 else 126
        g(f"    v_cvt_pk_bf16_f32 v{pk}, v{dp}, v{dp+1}")
        g(f"    v_cvt_pk_bf16_f32 v{pk+1}, v{dp+2}, v{dp+3}")
        g(f"    ds_write_b64 v24, {vr(pk,2)} offset:{32*tp}")
    lds_arrive(g, SY_B2, 30)
    g(f"""    v_bfe_u32 v25, v2, 2, 2
    v_and_b32 v26, 3, v2
    v_bfe_u32 v27, v2, 4, 1
    v_lshl_add_u32 v25, v33, 2, v25
    v_lshlrev_b32 v25, 6, v25
    v_lshl_add_u32 v25, v27, 5, v25
    v_lshl_add_u32 v25, v26, 3, v25
    s_mul_i32 s29, s22, {2*FSTRIDE}
    s_add_u32 s29, s29, {BREG}
    v_add_u32 v25, s29, v25
    s_add_u32 s30, s25, s22
    s_lshl_b32 s30, s30, 6
    s_cmp_eq_u32 s27, 1
    s_cselect_b32 s31, 32, s20
    s_add_u32 s30, s30, s31
    s_sub_u32 s31, 2048, s30
    s_cmp_eq_u32 s30, 0
    s_cselect_b32 s31, 1024, s31
    s_cselect_b32 s29, 1, 0
    v_lshlrev_b32 v28, 6, v32
    v_lshl_add_u32 v28, v33, 4, v28
    v_add_u32 v28, 2048, v28
    s_lshl_b32 s30, s30, 12
    s_lshl_b32 s31, s31, 12
    v_add_u32 v29, s30, v28
    v_add_u32 v38, s31, v28""")
    lds_wait(g, SY_B2, 30, 4, 12)
    g.ts(6)
    FR, FI = 104, 112
    def load_data(addr):
        for p, base in ((0, FR), (1, FI)):
            for ks in range(2):
                for j in range(2):
                    g(f"    ds_read_b64_tr_b16 {vr(base+4*ks+2*j,2)}, v{addr} offset:{p*FSTRIDE + 512*(2*ks+j)}")
    P, Qr, DR, DI, HR, HI, Y, PK = 128, 144, 160, 176, 192, 200, 208, 224
    def pq():
        g(f"    v_mfma_f32_32x32x16_bf16 {vr(P,16)}, {vr(FR,4)}, {vr(CF,4)}, 0")
        g(f"    v_mfma_f32_32x32x16_bf16 {vr(Qr,16)}, {vr(FR,4)}, {vr(NSF,4)}, 0")
        g(f"    v_mfma_f32_32x32x16_bf16 {vr(P,16)}, {vr(FR+4,4)}, {vr(CF+4,4)}, {vr(P,16)}")
        g(f"    v_mfma_f32_32x32x16_bf16 {vr(Qr,16)}, {vr(FR+4,4)}, {vr(NSF+4,4)}, {vr(Qr,16)}")
    def vrow(sg, rowaddr):
        s_, c_ = (SF, CF) if sg > 0 else (NSF, NCF)
        g(f"    v_mfma_f32_32x32x16_bf16 {vr(DR,16)}, {vr(FI,4)}, {vr(s_,4)}, {vr(P,16)}")
        g(f"    v_mfma_f32_32x32x16_bf16 {vr(DI,16)}, {vr(FI,4)}, {vr(c_,4)}, {vr(Qr,16)}")
        g(f"    v_mfma_f32_32x32x16_bf16 {vr(DR,16)}, {vr(FI+4,4)}, {vr(s_+4,4)}, {vr(DR,16)}")
        g(f"    v_mfma_f32_32x32x16_bf16 {vr(DI,16)}, {vr(FI+4,4)}, {vr(c_+4,4)}, {vr(DI,16)}")
        T1, T2 = 208, 224
        for rI in range(16):
            g(f"    v_mul_f32 v{T1+rI}, v{DR+rI}, v{TC+rI}")
            g(f"    v_mul_f32 v{T2+rI}, v{DI+rI}, v{TC+rI}")
        for rI in range(16):
            g(f"    v_fmac_f32 v{T1+rI}, v{DI+rI}, v{TS_+rI}")
            g(f"    v_fma_f32 v{T2+rI}, -v{DR+rI}, v{TS_+rI}, v{T2+rI}")
        for x in range(8):
            g(f"    v_cvt_pk_bf16_f32 v{HR+x}, v{T1+2*x}, v{T1+2*x+1}")
            g(f"    v_cvt_pk_bf16_f32 v{HI+x}, v{T2+2*x}, v{T2+2*x+1}")
        g(f"    v_mfma_f32_32x32x16_bf16 {vr(Y,16)}, {vr(HR,4)}, {vr(CF,4)}, 0")
        g(f"    v_mfma_f32_32x32x16_bf16 {vr(Y,16)}, {vr(HR+4,4)}, {vr(CF+4,4)}, {vr(Y,16)}")
        g(f"    v_mfma_f32_32x32x16_bf16 {vr(Y,16)}, {vr(HI,4)}, {vr(SF,4)}, {vr(Y,16)}")
        g(f"    v_mfma_f32_32x32x16_bf16 {vr(Y,16)}, {vr(HI+4,4)}, {vr(SF+4,4)}, {vr(Y,16)}")
        for x in range(8):
            g(f"    v_cvt_pk_bf16_f32 v{PK+x}, v{Y+2*x}, v{Y+2*x+1}")
        for b in (0, 4):
            g(f"    v_permlane32_swap_b32 v{PK+b}, v{PK+b+2}")
            g(f"    v_permlane32_swap_b32 v{PK+b+1}, v{PK+b+3}")
        g(f"    buffer_store_dwordx4 {vr(PK,4)}, v{rowaddr}, {OUT}, 0 offen")
        g(f"    buffer_store_dwordx4 {vr(PK+4,4)}, v{rowaddr}, {OUT}, 0 offen offset:32")
    load_data(25)
    g("    s_waitcnt lgkmcnt(0)")
    pq()
    vrow(+1, 29)
    g(f"""    s_cmp_eq_u32 s29, 1
    s_cbranch_scc0 b2_norm
    v_add_u32 v25, {8*FSTRIDE}, v25""")
    load_data(25)
    g("    s_waitcnt lgkmcnt(0)")
    pq()
    g("    s_nop 7\n    s_nop 7")
    g.label("b2_norm")
    vrow(-1, 38)
    g.ts(7)
    g.ts_flush()
    g("    s_endpgm")

def build():
    e = G()
    g = e
    g("""    s_cmp_ge_u32 s2, 256
    s_cbranch_scc1 main_exit
    s_load_dwordx16 s[52:67], s[0:1], 0
    s_load_dwordx4 s[68:71], s[0:1], 88
    s_load_dwordx2 s[72:73], s[0:1], 104""")
    if TS:
        g("    s_memrealtime s[84:85]")
    g(f"""    s_cmp_ge_u32 s2, {PFN}
    s_cbranch_scc1 pf_skip
    s_getpc_b64 s[74:75]
pf_pc:
    s_sub_u32 s74, s74, pf_pc-main_kernel
    s_subb_u32 s75, s75, 0
    v_lshlrev_b32 v240, 4, v0""")
    for i in range((CODE_KB + 7) // 8):
        if i: g(f"    v_add_u32 v240, 8192, v240")
        g(f"    v_min_u32 v241, text_end-main_kernel-16, v240")
        g(f"    global_load_dwordx4 v[244:247], v241, s[74:75]")
    g("""pf_skip:
    v_lshrrev_b32 v1, 6, v0
    v_and_b32 v0, 255, v0
    s_nop 0
    v_readfirstlane_b32 s3, v1
    s_cmp_ge_u32 s3, 4
    s_cbranch_scc1 role_b""")
    ae = G(); a_early(ae)
    am = G(); a_main(am)
    be = G(); b_early(be); b_main(be)
    for nm, path in (("A", e.l + ae.l + am.l), ("B", e.l + be.l)):
        pl, _ = asmlint.pad(path)
        errs = [x for x in asmlint.check_waits(pl, nm) if "v[244:247]" not in x]
        for x in errs[:30]: print("WAITERR", x)
    return e.l + ae.l + ["    s_branch role_a_main", "role_b:"] + be.l + ["role_a_main:"] + am.l + ["main_exit:", "    s_endpgm"]

def emit(path):
    lines = build()
    lines2, npad = asmlint.pad(lines)
    print("auto pads:", npad, "lines:", len(lines2))
    out = [HEADER.rstrip("\n")]
    out.append(f"; @launch grid=(256,1,1) block=(512,1,1) lds={LDS_TOTAL}")
    out.append('.amdgcn_target "amdgcn-amd-amdhsa--gfx950"')
    out.append(".text")
    n = NAME + "_kernel"
    out.append(f".globl {n}\n.p2align 8\n.type {n},@function\n{n}:\nmain_kernel:")
    out += lines2
    out.append("text_end:")
    out.append('.section .rodata,"a"')
    out.append(".p2align 6")
    out.append(f".amdhsa_kernel {n}")
    out.append("  .amdhsa_next_free_vgpr 256\n  .amdhsa_next_free_sgpr 102\n  .amdhsa_accum_offset 256\n  .amdhsa_group_segment_fixed_size 0\n  .amdhsa_kernarg_size 112\n  .amdhsa_user_sgpr_count 2\n  .amdhsa_user_sgpr_kernarg_segment_ptr 1\n  .amdhsa_system_sgpr_workgroup_id_x 1\n  .amdhsa_float_denorm_mode_32 3\n.end_amdhsa_kernel")
    open(path, "w").write("\n".join(out) + "\n")

if __name__ == "__main__":
    emit(sys.argv[1])
```

```python
import sys, os, struct
import asmlint
from asmlib import NAME, HEADER, ARG, SIZE, vr, sr

def f2u(x): return struct.unpack("<I", struct.pack("<f", x))[0]
def fl(x): return hex(f2u(float(x)))
ENV = lambda k, d: os.environ.get(k, d)
TS = ENV("TS", "0") == "1"
NT = " nt" if ENV("NT", "0") == "1" else ""
SC = " sc1"
PFN = int(ENV("PFN", "32"))
PRIO = int(ENV("PRIO", "2"))
PSL = int(ENV("PSL", "1"))
LSL = int(ENV("LSL", "1"))
XMT = int(ENV("XMT", "2"))
NOB = ENV("NOB", "0") == "1"
APRIO = int(ENV("APRIO", "1"))
OUTA = {"0": "", "1": " sc1", "2": " nt", "3": " sc1 nt"}[ENV("OUTA", "0")]
OUTB = {"0": "", "1": " sc1", "2": " nt", "3": " sc1 nt"}[ENV("OUTB", "0")]
KLATE = ENV("KLATE", "0") == "1"
XLATE = ENV("XLATE", "1") == "1"
GWAIT = ENV("GWAIT", "1") == "1"
LOCAL = ENV("LOCAL", "1") == "1"
SCA = " sc1" if ENV("SCA", "1") == "1" else ""
SCL = " sc1" if ENV("SCL", "0") == "1" else ""
FORCE_REC = ENV("FORCE_REC", "0") == "1"
NOB2 = ENV("NOB2", "0") == "1"
CODE_KB = int(ENV("CODE_KB", "24"))

UT_OFF, G1_OFF, Y2_OFF, FL_OFF, TS_OFF = 0, 4 << 20, 8 << 20, 12 << 20, 16 << 20
MB4 = 4 << 20
CONV_WSTRIDE = 8512; CONV_KOFF = 4224
BREG = 4 * CONV_WSTRIDE
EOFF = BREG + 16384
SYNC = BREG + 32768
LDS_TOTAL = SYNC + 64
FSTRIDE = 2048 + 8
SY_NONCE, SY_A1, SY_B1, SY_B2, SY_A2, SY_MF1, SY_MF2, SY_MG, SY_BX, SY_FS = [SYNC + 4 * i for i in range(10)]
MB1, MB2, MBL, MBG, MR1, MR2 = 0, 4096, 8192, 12288, 16384, 20480
LOC = 24576
FL_SIZE = 65536
KA = dict(q=52, k=54, v=56, shift=58, ssmk=60, ssmD=62, x=64, out=68, dbg=70, ws=72)

class G:
    def __init__(self): self.l = []
    def __call__(self, s=""):
        for x in s.split("\n"): self.l.append(x)
    def label(self, n): self.l.append(n + ":")
    def srd(self, r, arg, size=None, off=0):
        p = KA[arg]
        if off: self(f"    s_add_u32 s{r}, s{p}, {off}\n    s_addc_u32 s{r+1}, s{p+1}, 0")
        else: self(f"    s_mov_b32 s{r}, s{p}\n    s_mov_b32 s{r+1}, s{p+1}")
        self(f"    s_mov_b32 s{r+2}, {SIZE[arg] if size is None else size}\n    s_mov_b32 s{r+3}, 0x20000")
    def ts(self, i):
        if TS: self(f"    s_memrealtime s[82:83]\n    s_waitcnt lgkmcnt(0)\n    s_mov_b32 s{84+i}, s82")
    def ts_flush(self):
        if not TS: return
        self("    s_waitcnt vmcnt(0) lgkmcnt(0)")
        self.ts(11)
        self(f"    s_add_u32 s4, s72, {TS_OFF}\n    s_addc_u32 s5, s73, 0\n    s_mov_b32 s6, 0x400000\n    s_mov_b32 s7, 0x20000")
        for i in range(12): self(f"    v_mov_b32 v{200+i}, s{84+i}")
        self("""    s_getreg_b32 s8, hwreg(HW_REG_XCC_ID)
    v_mov_b32 v212, s8
    s_getreg_b32 s8, hwreg(HW_REG_HW_ID)
    v_mov_b32 v213, s8
    v_mov_b32 v214, 0
    v_mov_b32 v215, 0
    s_lshl_b32 s9, s2, 3
    s_add_u32 s9, s9, s3
    s_lshl_b32 s9, s9, 6
    v_mov_b32 v216, s9
    s_mov_b64 exec, 1
    s_nop 4
    buffer_store_dwordx4 v[200:203], v216, s[4:7], 0 offen
    buffer_store_dwordx4 v[204:207], v216, s[4:7], 0 offen offset:16
    buffer_store_dwordx4 v[208:211], v216, s[4:7], 0 offen offset:32
    buffer_store_dwordx4 v[212:215], v216, s[4:7], 0 offen offset:48
    s_waitcnt vmcnt(0)""")

uid = [0]
def lab(p):
    uid[0] += 1
    return f"{p}{uid[0]}"

def poll(g, vaddr, vnonce, vtmp, srd, stmp, sleep=1):
    L = lab("poll")
    g(f"""    s_mov_b32 s{stmp}, 0
{L}:
    buffer_load_dword v{vtmp}, v{vaddr}, {srd}, 0 offen sc1
    s_waitcnt vmcnt(0)
    v_cmp_ne_u32 vcc, v{vtmp}, v{vnonce}
    s_nop 4
    s_cbranch_vccz {L}_ok
    s_add_u32 s{stmp}, s{stmp}, 1
    s_cmp_gt_u32 s{stmp}, 0x80000
    s_cbranch_scc1 {L}_ok
    s_sleep {sleep*PSL}
    s_branch {L}
{L}_ok:""")
def poll_tagged(g, vaddr, vflag, vtmp, stmp, vown_rec_addr, rec_off, sleep=1):
    L = lab("pt")
    g(f"""    s_mov_b32 s{stmp}, 0
{L}:
    buffer_load_dword v{vtmp}, v{vaddr}, {FL}, 0 offen nt
    s_waitcnt vmcnt(0)
    v_cmp_ne_u32 vcc, v{vtmp}, v{vflag}
    s_nop 4
    s_cbranch_vccz {L}_{'ok' if not FORCE_REC else 'glob'}
    s_add_u32 s{stmp}, s{stmp}, 1
    s_and_b32 s{stmp+1}, s{stmp}, 3
    s_cmp_eq_u32 s{stmp+1}, 0
    s_cbranch_scc1 {L}_glob
    s_sleep {sleep*PSL}
    s_branch {L}
{L}_glob:
    s_cmp_gt_u32 s{stmp}, 0x80000
    s_cbranch_scc1 {L}_ok
    v_subrev_u32 v{vtmp+1}, {LOC}, v{vaddr}
    buffer_load_dword v{vtmp}, v{vtmp+1}, {FL}, 0 offen sc1
    s_waitcnt vmcnt(0)
    v_cmp_ne_u32 vcc, v{vtmp}, v{vflag}
    s_nop 4
    s_cbranch_vccnz {L}
{L}_ok:""")
def wave_polltag_or_spin(g, vaddr, vflag, vtmp, stmp, vown, rec_off, mbox):
    L = lab("wp")
    g(f"    s_cbranch_scc0 {L}_spin")
    poll_tagged(g, vaddr, vflag, vtmp, stmp, vown, rec_off)
    lds_set(g, mbox, vtmp)
    g(f"    s_branch {L}_done\n{L}_spin:")
    lds_wait(g, mbox, vtmp, 1, stmp)
    g(f"{L}_done:")
def lds_arrive(g, addr, vt):
    g(f"""    v_mov_b32 v{vt}, {addr}
    v_mov_b32 v{vt+1}, 1
    s_waitcnt lgkmcnt(0)
    s_mov_b64 exec, 1
    ds_add_u32 v{vt}, v{vt+1}
    s_mov_b64 exec, -1""")
def lds_wait(g, addr, vt, target, stmp):
    L = lab("spin")
    g(f"""    v_mov_b32 v{vt}, {addr}
    s_mov_b32 s{stmp+1}, 0
{L}:
    ds_read_b32 v{vt+1}, v{vt}
    s_waitcnt lgkmcnt(0)
    v_readfirstlane_b32 s{stmp}, v{vt+1}
    s_add_u32 s{stmp+1}, s{stmp+1}, 1
    s_cmp_gt_u32 s{stmp+1}, 0x1000000
    s_cbranch_scc1 {L}_ok
    s_cmp_ge_u32 s{stmp}, {target}
    s_cbranch_scc1 {L}_ok
    s_sleep {LSL}
    s_branch {L}
{L}_ok:""")
def lds_set(g, addr, vt):
    g(f"""    v_mov_b32 v{vt}, {addr}
    v_mov_b32 v{vt+1}, 1
    ds_write_b32 v{vt}, v{vt+1}""")
def lds_last(g, addr, vt, stmp):
    g(f"""    v_mov_b32 v{vt}, {addr}
    v_mov_b32 v{vt+1}, 1
    s_mov_b64 exec, 1
    ds_add_rtn_u32 v{vt+1}, v{vt}, v{vt+1}
    s_waitcnt lgkmcnt(0)
    s_mov_b64 exec, -1
    v_readfirstlane_b32 s{stmp}, v{vt+1}
    s_cmp_eq_u32 s{stmp}, 3""")
def wave_poll_or_spin(g, is_poller_scc, vaddr, vnonce, vtmp, srd, stmp, mbox, sleep=1):
    L = lab("wp")
    g(f"    s_cbranch_scc0 {L}_spin")
    poll(g, vaddr, vnonce, vtmp, srd, stmp, sleep)
    lds_set(g, mbox, vtmp)
    g(f"    s_branch {L}_done\n{L}_spin:")
    lds_wait(g, mbox, vtmp, 1, stmp)
    g(f"{L}_done:")

K, V_, SH, UT, SK_, Y2, Q, OUT, FL, DBG = "s[4:7]", "s[8:11]", "s[12:15]", "s[16:19]", "s[20:23]", "s[24:27]", "s[28:31]", "s[32:35]", "s[44:47]", "s[48:51]"
X, G1 = "s[4:7]", "s[8:11]"
KR, VR, SR = 20, 42, 60
ADDR = [5, 9, 10, 11]

def a_early(g):
    if APRIO: g(f"    s_setprio {APRIO}")
    g("""    s_and_b32 s74, s2, 7
    s_lshr_b32 s75, s2, 3
    s_lshl_b32 s74, s74, 1
    s_lshr_b32 s76, s75, 4
    s_add_u32 s74, s74, s76             ; ct
    s_and_b32 s75, s75, 15
    s_lshl_b32 s36, s75, 7              ; rt*128
    s_lshl_b32 s37, s74, 6              ; ct*64
    v_lshrrev_b32 v1, 4, v0
    v_and_b32 v2, 15, v0
    v_lshl_add_u32 v3, v1, 3, s36       ; row0
    v_lshl_add_u32 v4, v2, 2, s37       ; ch0
    v_lshlrev_b32 v5, 11, v3
    v_lshl_add_u32 v5, v4, 1, v5
    v_subrev_u32 v6, 6144, v5
    v_subrev_u32 v7, 4096, v5
    v_subrev_u32 v8, 2048, v5
    v_add_u32 v9, 4096, v5
    v_add_u32 v10, 8192, v5
    v_add_u32 v11, 12288, v5
    v_lshlrev_b32 v12, 3, v4
    s_mov_b32 s6, 0x400000
    s_mov_b32 s7, 0x20000
    s_mov_b32 s10, 0x400000
    s_mov_b32 s11, 0x20000
    s_waitcnt lgkmcnt(0)
    s_mov_b32 s4, s54
    s_mov_b32 s5, s55
    s_mov_b32 s8, s56
    s_mov_b32 s9, s57""")
    for i, ad in enumerate((6, 7, 8)):
        g(f"    buffer_load_dwordx2 {vr(KR+2*i,2)}, v{ad}, {K}, 0 offen{NT}")
    for r in range(8):
        off = " offset:2048" if r & 1 else ""
        g(f"    buffer_load_dwordx2 {vr(KR+6+2*r,2)}, v{ADDR[r>>1]}, {K}, 0 offen{off}{NT}")
    for r in range(8):
        off = " offset:2048" if r & 1 else ""
        g(f"    buffer_load_dwordx2 {vr(VR+2*r,2)}, v{ADDR[r>>1]}, {V_}, 0 offen{off}{NT}")
    g.srd(12, "shift")
    g(f"    buffer_load_dwordx4 {vr(SR,4)}, v12, {SH}, 0 offen")
    g(f"    buffer_load_dwordx4 {vr(SR+4,4)}, v12, {SH}, 0 offen offset:16")

def a_main(g):
    g.srd(20, "ssmk")
    g(f"""    s_lshl_b32 s38, s75, 2
    s_add_u32 s38, s38, s37
    s_add_u32 s38, s38, s3
    s_mul_i32 s39, s3, {CONV_WSTRIDE}   ; LB
    s_lshl_b32 s40, s38, 12             ; ch*4096
    v_and_b32 v140, 63, v0              ; lane
    v_lshlrev_b32 v141, 4, v140         ; lane*16
    s_add_u32 m0, s39, {CONV_KOFF + 160}
    s_nop 0""")
    def kdma():
        for i in range(4):
            g(f"    buffer_load_dwordx4 v141, {SK_}, s40 offen offset:{1024*i}{NT} lds")
    if not KLATE: kdma()
    NVM = 0 if KLATE else 4
    g.srd(16, "ws", MB4, UT_OFF); g.srd(44, "ws", FL_SIZE, FL_OFF)
    g(f"""    s_lshl_b32 s41, s38, 1
    s_and_b32 s41, s41, 0xfffffffc
    s_load_dword s42, s[62:63], s41      ; D pair
    s_load_dword s43, s[60:61], s40      ; k[0],k[1]
    v_mov_b32 v144, 0
    v_mov_b32 v145, 0
    v_mov_b32 v146, 0
    v_mov_b32 v147, 0
    v_min_u32 v148, 5, v140
    v_lshl_add_u32 v148, v148, 4, s39
    ds_write_b128 v148, v[144:147]
    v_min_u32 v148, 9, v140
    v_lshl_add_u32 v148, v148, 4, s39
    ds_write_b128 v148, v[144:147] offset:{CONV_KOFF}
    s_mov_b32 s76, 0xffff0000
    s_barrier""")
    g.ts(1)
    SK, KF, VF = 70, 88, 132
    def unpack(dst, src):
        for p in range(2):
            g(f"    v_lshlrev_b32 v{dst+2*p}, 16, v{src+p}")
            g(f"    v_and_b32 v{dst+2*p+1}, s76, v{src+p}")
    for r in range(11):
        g(f"    s_waitcnt vmcnt({20 + NVM - r})")
        unpack(KF + 4 * r, KR + 2 * r)
    g(f"    s_waitcnt vmcnt({NVM})")
    for p in range(2):
        for e in range(2):
            c = 2 * p + e
            d0, d1 = SR + 2 * c, SR + 2 * c + 1
            g(f"    v_lshlrev_b32 v{SK+0+2*p+e}, 16, v{d0}")
            g(f"    v_and_b32 v{SK+4+2*p+e}, s76, v{d0}")
            g(f"    v_lshlrev_b32 v{SK+8+2*p+e}, 16, v{d1}")
            g(f"    v_and_b32 v{SK+12+2*p+e}, s76, v{d1}")
    g.ts(2)
    g("""    v_lshlrev_b32 v13, 12, v4
    v_lshl_add_u32 v13, v3, 1, v13
    s_mov_b32 s77, 4096
    s_mov_b32 s78, 8192
    s_mov_b32 s79, 12288""")
    for r in range(8):
        vf = VF + 4 * (r & 1)
        unpack(vf, VR + 2 * r)
        for p in range(2):
            t = KF + 4 * r + 2 * p
            kk = lambda rr: vr(KF + 4 * rr + 2 * p, 2)
            sk = lambda j: vr(SK + 4 * j + 2 * p, 2)
            g(f"    v_pk_mul_f32 {vr(t,2)}, {kk(r)}, {sk(3)}")
            g(f"    v_pk_fma_f32 {vr(t,2)}, {kk(r+1)}, {sk(2)}, {vr(t,2)}")
            g(f"    v_pk_fma_f32 {vr(t,2)}, {kk(r+2)}, {sk(1)}, {vr(t,2)}")
            g(f"    v_pk_fma_f32 {vr(t,2)}, {kk(r+3)}, {sk(0)}, {vr(t,2)}")
            g(f"    v_pk_mul_f32 {vr(t,2)}, {vr(t,2)}, {vr(vf+2*p,2)}")
    g.srd(48, "dbg")
    L = lab("nl")
    g(f"""    v_mov_b32 v143, 0
    s_cmp_eq_u32 s3, 0
    s_cbranch_scc0 {L}
    buffer_load_dword v149, v143, {DBG}, 0 offen
{L}:""")
    OUTR = 20
    soff = ["0", "s77", "s78", "s79"]
    for c in range(4):
        p, e = c >> 1, c & 1
        for j in range(4):
            u0 = KF + 4 * (2 * j) + 2 * p + e
            u1 = KF + 4 * (2 * j + 1) + 2 * p + e
            g(f"    v_cvt_pk_bf16_f32 v{OUTR+4*c+j}, v{u0}, v{u1}")
        g(f"    buffer_store_dwordx4 {vr(OUTR+4*c,4)}, v13, {UT}, {soff[c]} offen{SCA}")
    if KLATE: kdma()
    g(f"""    v_lshrrev_b32 v9, 4, v140            ; hh
    v_bfe_u32 v10, v140, 2, 2            ; r
    v_and_b32 v11, 3, v140               ; cc
    v_lshlrev_b32 v14, 5, v11
    v_lshl_add_u32 v14, v9, 6, v14
    v_lshl_add_u32 v14, v10, 3, v14
    v_add_u32 v14, s39, v14              ; vVaddr
    v_lshlrev_b32 v15, 3, v11
    v_lshlrev_b32 v16, 6, v9
    v_sub_u32 v15, v15, v16
    v_lshlrev_b32 v16, 3, v10
    v_sub_u32 v15, v15, v16
    s_add_u32 s77, s39, {CONV_KOFF + 224}
    v_add_u32 v15, s77, v15              ; vWaddr
    s_and_b32 s77, s38, 1
    s_cmp_eq_u32 s77, 0
    s_cselect_b32 s77, 16, 0
    s_waitcnt lgkmcnt(0)
    s_lshl_b32 s42, s42, s77
    s_and_b32 s42, s42, 0xffff0000       ; D as f32
    s_lshl_b32 s43, s43, 16              ; k0 as f32
    v_mov_b32 v16, s42
    v_add_f32 v16, s43, v16
    v_cvt_pk_bf16_f32 v16, v16, v16
    v_mov_b32 v17, s39
    s_lshl_b32 s77, s74, 8
    v_and_b32 v18, 15, v140
    v_lshlrev_b32 v142, 2, v18
    v_add_u32 v142, s77, v142
    v_add_u32 v142, {LOC}, v142
    s_lshl_b32 s79, s75, 2
    s_add_u32 s79, s79, s77
    v_mov_b32 v18, s79
    s_waitcnt vmcnt({4 if KLATE else 0})""")
    g.ts(3)
    L = lab("nz")
    g(f"""    s_cmp_eq_u32 s3, 0
    s_cbranch_scc0 {L}_done
    s_mov_b32 s81, 0
{L}:
    v_readfirstlane_b32 s80, v149
    s_cmp_lg_u32 s80, 0
    s_cbranch_scc1 {L}_ok
    s_add_u32 s81, s81, 1
    s_cmp_gt_u32 s81, 0x80000
    s_cbranch_scc1 {L}_ok
    s_sleep 4
    buffer_load_dword v149, v143, {DBG}, 0 offen sc1
    s_waitcnt vmcnt(0)
    s_branch {L}
{L}_ok:
    v_mov_b32 v12, {SY_NONCE}
    ds_write_b32 v12, v149
{L}_done:""")
    lds_wait(g, SY_NONCE, 12, 1, 80)
    g("    v_mov_b32 v149, v13")
    L = lab("f1")
    lds_last(g, SY_A1, 12, 80)
    g(f"""    s_cbranch_scc0 {L}
    v_add_u32 v12, {LOC}, v18
    s_mov_b64 exec, 1
    buffer_store_dword v149, v12, {FL}, 0 offen
    buffer_store_dword v149, v18, {FL}, 0 offen sc1
    s_mov_b64 exec, -1
    s_waitcnt vmcnt(1)
    v_mov_b32 v12, {SY_FS}
    v_mov_b32 v13, 1
    ds_write_b32 v12, v13
{L}:
    s_cmp_eq_u32 s3, 0""")
    wave_polltag_or_spin(g, 142, 149, 12, 80, 18, MR1 - MB1, SY_MF1)
    g.ts(4)
    g(f"    s_add_u32 m0, s39, 96")
    g("    s_nop 0")
    for i in range(4):
        g(f"    buffer_load_dwordx4 v141, {UT}, s40 offen offset:{1024*i}{SCL} lds")
    g.ts(10)
    g.srd(24, "ws", MB4, Y2_OFF); g.srd(28, "q"); g.srd(32, "out")
    if PRIO: g(f"    s_setprio {PRIO}")
    lane, vV, vW = 140, 14, 15
    V = 20; W = 84; ACC = 100; NW = 4
    A2 = [228, 229]; A1 = [230, 231]; Y = [232, 233]; Z = 234; PK = 235; YA = 236
    NONCE = 237
    g(f"    v_mov_b32 v{NONCE}, v149")
    g(f"    v_add_u32 v238, {MB2}, v142")
    g(f"    v_mov_b32 v239, v141")
    g(f"    v_mov_b32 v240, v3")
    g(f"    v_mov_b32 v241, v4")
    g(f"    v_add_u32 v242, {MB2}, v18")
    g(f"    v_mov_b32 v{Z}, 0")
    g(f"    v_lshl_add_u32 v{YA}, v{lane}, 1, s39")
    g("    s_waitcnt vmcnt(0)")
    g(f"    ds_write_b16 v17, v16 offset:{CONV_KOFF + 160}")
    g.ts(5)
    start_idx = len(g.l)
    def loadV(J):
        for j in range(2):
            g(f"    ds_read_b64_tr_b16 {vr(V+4*J+2*j,2)}, v{vV} offset:{256*J + 32*j}")
    def loadW(gg):
        w = W + 4 * (gg % NW)
        for j in range(2):
            g(f"    ds_read_b64_tr_b16 {vr(w+2*j,2)}, v{vW} offset:{128*gg + 32*(1-j)}")
    loadW(0); loadV(0); loadV(1); loadW(1); loadV(2); loadV(3); loadV(4)
    started = set()
    def reduce_tile(T):
        r0, r1, r2, r3 = [ACC + 4 * T + i for i in range(4)]
        p3 = (ACC + 4 * (T - 1) + 3) if T else Z
        a2, a2p = A2[T & 1], (A2[(T - 1) & 1] if T else Z)
        a1, a1p = A1[T & 1], (A1[(T - 1) & 1] if T else Z)
        y = Y[T & 1]
        ops = [
            (0, f"    v_add_f32_dpp v{a2}, v{p3}, v{r2} wave_ror:1 row_mask:0x1 bank_mask:0x1"),
            (0, f"    v_add_f32_dpp v{a1}, v{a2p}, v{r1} wave_ror:1 row_mask:0x1 bank_mask:0x1"),
            (1, f"    v_add_f32_dpp v{y}, v{a1p}, v{r0} wave_ror:1 row_mask:0x1 bank_mask:0x1"),
            (1, f"    v_add_f32_dpp v{a2}, v{r3}, v{r2} wave_shr:1 row_mask:0xf bank_mask:0xf"),
            (3, f"    v_add_f32_dpp v{a1}, v{a2}, v{r1} wave_shr:1 row_mask:0xf bank_mask:0xf"),
            (5, f"    v_add_f32_dpp v{y}, v{a1}, v{r0} wave_shr:1 row_mask:0xf bank_mask:0xf"),
        ]
        if T & 1:
            ops += [(6, f"    v_cvt_pk_bf16_f32 v{PK}, v{Y[0]}, v{Y[1]}"),
                    (7, f"    ds_write_b16 v{YA}, v{PK} offset:{128*(T-1)}"),
                    (7, f"    ds_write_b16_d16_hi v{YA}, v{PK} offset:{128*T}")]
        return ops
    pending = []
    for gg in range(32):
        Js = list(range((31 - gg) // 2 + 1))
        for n, J in enumerate(Js):
            T = gg + 2 * J
            if gg == 0:
                if J + 5 < 16: loadV(J + 5)
                if J == 11: loadW(2)
                if J == 13: loadW(3)
                g(f"    s_waitcnt lgkmcnt(WAITFOR:v{vV} offset:{256*J + 32})")
            elif n == 0:
                g(f"    s_waitcnt lgkmcnt(WAITFOR:v{vW} offset:{128*gg})")
            c = vr(ACC + 4 * T, 4) if T in started else "0"
            started.add(T)
            g(f"    v_mfma_f32_16x16x32_bf16 {vr(ACC+4*T,4)}, {vr(V+4*J,4)}, {vr(W+4*(gg%NW),4)}, {c}")
            if gg > 0 and n == 0 and gg + 3 < 32: loadW(gg + 3)
            while pending and pending[0][0] + 1 <= n: g(pending.pop(0)[1])
        while pending: g(pending.pop(0)[1])
        pending = reduce_tile(gg)
    while pending: g(pending.pop(0)[1])
    q = []
    for i in range(start_idx, len(g.l)):
        s = g.l[i].strip()
        if s.startswith("ds_"): q.append(s)
        elif s.startswith("s_waitcnt") and "WAITFOR:" in s:
            tag = s.split("WAITFOR:")[1].rstrip(")")
            cand = [k for k, t in enumerate(q) if t.endswith(tag)]
            if not cand:
                g.l[i] = "    s_nop 0"; continue
            idx = max(cand); n = len(q) - 1 - idx
            assert n <= 15, n
            g.l[i] = f"    s_waitcnt lgkmcnt({n})"
            q = q[idx + 1:]
    g.ts(6)
    if PRIO: g(f"    s_setprio {APRIO}")
    g(f"""    s_waitcnt lgkmcnt(0)
    v_add_u32 v17, s39, v239""")
    for i in range(4):
        g(f"    ds_read_b128 {vr(20+4*i,4)}, v17 offset:{1024*i}")
    for i in range(4):
        g(f"    s_waitcnt lgkmcnt({3-i})")
        g(f"    buffer_store_dwordx4 {vr(20+4*i,4)}, v239, {Y2}, s40 offen offset:{1024*i}{SCA}")
    g(f"""    v_lshlrev_b32 v5, 11, v240
    v_lshl_add_u32 v5, v241, 1, v5
    v_add_u32 v9, 4096, v5
    v_add_u32 v10, 8192, v5
    v_add_u32 v11, 12288, v5""")
    QR, YR = 40, 60
    for r in range(8):
        off = " offset:2048" if r & 1 else ""
        g(f"    buffer_load_dwordx2 {vr(QR+2*r,2)}, v{ADDR[r>>1]}, {Q}, 0 offen{off}{NT}")
    L = lab("e2")
    g(f"""    v_lshlrev_b32 v13, 12, v241
    v_lshl_add_u32 v13, v240, 1, v13
    v_lshlrev_b32 v6, 12, v240
    v_lshl_add_u32 v6, v241, 1, v6
    s_waitcnt vmcnt(8)""")
    lds_last(g, SY_A2, 7, 80)
    g(f"""    s_cbranch_scc0 {L}
    v_add_u32 v7, {LOC}, v242
    s_mov_b64 exec, 1
    buffer_store_dword v{NONCE}, v7, {FL}, 0 offen
    buffer_store_dword v{NONCE}, v242, {FL}, 0 offen sc1
    s_mov_b64 exec, -1
{L}:""")
    g.ts(7)
    g("    s_cmp_eq_u32 s3, 0")
    wave_polltag_or_spin(g, 238, NONCE, 7, 80, 242, MR2 - MB2, SY_MF2)
    g.ts(8)
    g("""    s_mov_b32 s77, 4096
    s_mov_b32 s78, 8192
    s_mov_b32 s79, 12288""")
    for c in range(4):
        g(f"    buffer_load_dwordx4 {vr(YR+4*c,4)}, v13, {Y2}, {soff[c]} offen{SCL}")
    g("    s_waitcnt vmcnt(0)")
    g.ts(9)
    T = 80
    for r in range(8):
        t = T + 8 * (r & 1)
        for c in range(4):
            qs = QR + 2 * r + (c >> 1)
            ys = YR + 4 * c + (r >> 1)
            g(f"    v_lshlrev_b32 v{t+c}, 16, v{qs}" if c % 2 == 0 else f"    v_and_b32 v{t+c}, s76, v{qs}")
            g(f"    v_lshlrev_b32 v{t+4+c}, 16, v{ys}" if r % 2 == 0 else f"    v_and_b32 v{t+4+c}, s76, v{ys}")
        g(f"    v_pk_mul_f32 {vr(t,2)}, {vr(t,2)}, {vr(t+4,2)}")
        g(f"    v_pk_mul_f32 {vr(t+2,2)}, {vr(t+2,2)}, {vr(t+6,2)}")
        o = 100 + 2 * r
        g(f"    v_cvt_pk_bf16_f32 v{o}, v{t}, v{t+1}")
        g(f"    v_cvt_pk_bf16_f32 v{o+1}, v{t+2}, v{t+3}")
        if r: g(f"    s_mov_b32 s80, {4096*r}")
        g(f"    buffer_store_dwordx2 {vr(o,2)}, v6, {OUT}, {'s80' if r else '0'} offen{OUTA}")
    g.ts_flush()
    g("    s_endpgm")

def b_early(g):
    g(f"""    s_sub_u32 s22, s3, 4
    s_and_b32 s20, s2, 7                 ; g
    s_lshr_b32 s21, s2, 3
    v_and_b32 v2, 63, v0                 ; lane
    s_lshl_b32 s23, s20, 2
    s_add_u32 s23, s23, s22              ; s1 = 4g + w
    s_lshl_b32 s24, s22, 12
    s_add_u32 s24, s24, {BREG}
    v_lshrrev_b32 v3, 2, v2
    v_and_b32 v4, 3, v2
    v_lshrrev_b32 v5, 5, v2
    v_lshlrev_b32 v5, 1, v5
    v_xor_b32 v4, v4, v5
    v_lshlrev_b32 v6, 16, v3
    v_lshl_add_u32 v6, v4, 4, v6
    s_lshl_b32 s25, s23, 11
    s_lshl_b32 s26, s21, 6
    s_add_u32 s25, s25, s26
    v_add_u32 v6, s25, v6
    s_mov_b32 s6, 0x400000
    s_mov_b32 s7, 0x20000
    s_mov_b32 m0, s24
    s_waitcnt lgkmcnt(0)
    s_mov_b32 s4, s64
    s_mov_b32 s5, s65""")
    if not XLATE: xdma(g)

def xdma(g):
    for i in range(4):
        g(f"    s_add_u32 m0, s24, {1024*i}")
        g(f"    s_mov_b32 s27, {i << 20}")
        g(f"    buffer_load_dwordx4 v6, {X}, s27 offen{NT} lds")

def b_main(g):
    g.srd(48, "dbg")
    L = lab("nonce")
    g(f"""    s_or_b32 s12, s2, s22
    s_cmp_eq_u32 s12, 0
    s_cbranch_scc0 {L}
    s_memrealtime s[12:13]
    s_waitcnt lgkmcnt(0)
    s_or_b32 s12, s12, 1
    v_mov_b32 v242, s12
    v_mov_b32 v243, 0
    s_mov_b64 exec, 1
    buffer_store_dword v242, v243, {DBG}, 0 offen sc1
    s_mov_b64 exec, -1
{L}:""")
    L = lab("init")
    g(f"""    s_cmp_eq_u32 s22, 0
    s_cbranch_scc0 {L}
    v_and_b32 v7, 15, v2
    v_lshlrev_b32 v7, 2, v7
    v_add_u32 v7, {SYNC}, v7
    v_mov_b32 v8, 0
    ds_write_b32 v7, v8
    s_waitcnt lgkmcnt(0)
{L}:
    v_mov_b32 v243, 0
    s_barrier""")
    if NOB:
        g.ts_flush(); g("    s_endpgm")
    g.srd(8, "ws", MB4, G1_OFF); g.srd(32, "out"); g.srd(44, "ws", FL_SIZE, FL_OFF)
    g.ts(1)
    g(f"""    v_and_b32 v7, 15, v2                 ; m
    v_lshrrev_b32 v8, 4, v2              ; h
    v_lshrrev_b32 v9, 1, v7
    v_and_b32 v10, 1, v7                 ; part
    v_lshlrev_b32 v11, 8, v8
    v_add_u32 v11, s23, v11              ; s1 + 256h
    v_cvt_f32_u32 v11, v11
    v_mul_f32 v11, 0x3a000000, v11       ; /2048
    v_cvt_f32_u32 v12, v10
    v_mul_f32 v12, 0x3e800000, v12       ; part/4""")
    AF = 32
    for mt in range(4):
        if XLATE and mt == XMT: xdma(g)
        g(f"    v_add_u32 v13, {8*mt}, v9")
        g("    v_cvt_f32_u32 v13, v13")
        if mt == 0:
            g("""    v_cmp_eq_u32 vcc, 1, v7
    v_mov_b32 v15, 0x42000000
    v_cndmask_b32 v13, v13, v15, vcc
    v_cvt_f32_u32 v15, s23
    v_mul_f32 v15, 0xbc800000, v15
    v_cndmask_b32 v14, v12, v15, vcc
    v_fma_f32 v20, v13, v11, v14""")
        else:
            g("    v_fma_f32 v20, v13, v11, v12")
        g("    v_mul_f32 v17, 0x3c800000, v13")
        g("    v_mul_f32 v18, 0x41c80000, v17")
        for ks in range(2):
            if ks: g("    v_add_f32 v20, v28, v18")
            for i in range(1, 8): g(f"    v_add_f32 v{20+i}, v{19+i}, v17")
            g("    v_mov_b32 v28, v27")
            for i in range(8): g(f"    v_cos_f32 v{20+i}, v{20+i}")
            for j in range(4):
                g(f"    v_cvt_pk_bf16_f32 v{AF + 8*mt + 4*ks + j}, v{20+2*j}, v{21+2*j}")
    if XLATE and XMT >= 4: xdma(g)
    g(f"""    v_lshrrev_b32 v18, 2, v7
    v_and_b32 v19, 3, v7
    v_lshl_add_u32 v18, v8, 3, v18
    v_lshlrev_b32 v18, 6, v18
    v_lshl_add_u32 v18, v19, 3, v18
    v_add_u32 v18, s24, v18
    v_and_b32 v19, 1, v8
    v_lshlrev_b32 v19, 5, v19
    v_add_u32 v28, v18, v19
    v_xor_b32 v19, 32, v19
    v_add_u32 v29, v18, v19
    s_waitcnt vmcnt(0)""")
    g.ts(2)
    BF = 64
    for nt in range(2):
        for ks in range(2):
            for j in range(2):
                d = BF + 8 * nt + 4 * ks + 2 * j
                g(f"    ds_read_b64_tr_b16 {vr(d,2)}, v{28+nt} offset:{2048*ks + 256*j}")
    AC = 80
    g(f"""    v_lshlrev_b32 v18, 6, v8
    v_add_u32 v18, v18, v7
    v_lshlrev_b32 v18, 4, v18
    s_lshl_b32 s27, s22, 2
    s_add_u32 s27, s27, {EOFF}
    v_add_u32 v18, s27, v18
    s_waitcnt lgkmcnt(0)""")
    for ks in range(2):
        for mt in range(4):
            for nt in range(2):
                d = AC + 8 * mt + 4 * nt
                c = "0" if ks == 0 else vr(d, 4)
                g(f"    v_mfma_f32_16x16x32_bf16 {vr(d,4)}, {vr(AF+8*mt+4*ks,4)}, {vr(BF+8*nt+4*ks,4)}, {c}")
    for mt in range(4):
        for nt in range(2):
            d = AC + 8 * mt + 4 * nt
            t = 20 + 2 * ((2 * mt + nt) % 4)
            g(f"    v_cvt_pk_bf16_f32 v{t}, v{d}, v{d+1}")
            g(f"    v_cvt_pk_bf16_f32 v{t+1}, v{d+2}, v{d+3}")
            g(f"    ds_write_b32 v18, v{t} offset:{4096*mt + 256*nt}")
            g(f"    ds_write_b32 v18, v{t+1} offset:{4096*mt + 256*nt + 512}")
    g(f"""    v_lshlrev_b32 v18, 4, v0
    v_add_u32 v18, {EOFF}, v18
    v_lshrrev_b32 v19, 5, v0
    v_lshlrev_b32 v19, 17, v19
    v_and_b32 v20, 31, v0
    v_lshl_add_u32 v19, v20, 4, v19
    s_lshl_b32 s25, s20, 14
    s_lshl_b32 s26, s21, 9
    s_add_u32 s25, s25, s26
    v_add_u32 v19, s25, v19""")
    lds_arrive(g, SY_BX, 30)
    lds_wait(g, SY_BX, 30, 4, 12)
    for j in range(4):
        g(f"    ds_read_b128 {vr(32+4*j,4)}, v18 offset:{4096*j}")
    if GWAIT:
        g("    s_waitcnt lgkmcnt(0)")
        gw = ENV("GW2", "2")
        lds_wait(g, {"0": SY_A1, "1": SY_MF1, "2": SY_FS}[gw], 22, 4 if gw == "0" else 1, 12)
    for j in range(4):
        g(f"    s_mov_b32 s27, {j << 20}")
        if not GWAIT: g(f"    s_waitcnt lgkmcnt({3-j})")
        g(f"    buffer_store_dwordx4 {vr(32+4*j,4)}, v19, {G1}, s27 offen{SC}")
    g(f"""    s_and_b32 s14, s2, 7
    s_lshr_b32 s15, s2, 3
    s_lshl_b32 s14, s14, 1
    s_lshr_b32 s16, s15, 4
    s_add_u32 s14, s14, s16
    s_and_b32 s15, s15, 15               ; i
    s_and_b32 s20, s2, 7
    s_lshr_b32 s21, s2, 6
    s_lshl_b32 s21, s21, 3
    s_add_u32 s20, s20, s21              ; slot
    s_lshr_b32 s21, s2, 3
    s_and_b32 s21, s21, 7                ; j
    v_and_b32 v3, 15, v2
    v_lshrrev_b32 v4, 4, v2
    v_lshlrev_b32 v5, 14, v4
    v_lshl_add_u32 v5, v3, 4, v5
    s_lshl_b32 s23, s20, 17
    s_lshl_b32 s24, s22, 12
    s_add_u32 s23, s23, s24
    v_add_u32 v5, s23, v5
    v_add_u32 v6, 0x10000, v5""")
    lds_wait(g, SY_NONCE, 21, 1, 12)
    g("    v_mov_b32 v122, v22\n    s_waitcnt vmcnt(0)")
    g.ts(3)
    L = lab("b1sig")
    lds_last(g, SY_B1, 30, 12)
    g(f"""    s_cbranch_scc0 {L}
    s_lshl_b32 s12, s14, 8
    s_lshl_b32 s13, s15, 2
    s_add_u32 s12, s12, s13
    s_add_u32 s12, s12, {MBL}
    v_mov_b32 v30, s12
    s_mov_b64 exec, 1
    buffer_store_dword v122, v30, {FL}, 0 offen sc1
    s_mov_b64 exec, -1
{L}:""")
    g(f"""    v_lshrrev_b32 v7, 1, v3              ; tl
    v_and_b32 v8, 1, v3                  ; part
    s_lshl_b32 s25, s21, 2
    s_cmp_eq_u32 s20, 0
    s_cselect_b32 s26, 1, 0
    s_cmp_ge_u32 s21, 4
    s_cselect_b32 s27, s26, 0
    s_cmp_eq_u32 s21, 0
    s_cselect_b32 s28, s26, 0
    s_and_b32 s29, s25, 15
    s_cmp_eq_u32 s27, 1
    s_cselect_b32 s25, s29, s25
    v_add_u32 v9, s25, v7
    v_cmp_eq_u32 vcc, 4, v7
    v_mov_b32 v10, 16
    v_cndmask_b32 v9, v9, v10, vcc
    v_cvt_f32_u32 v9, v9
    v_mul_f32 v9, {fl(1/32)}, v9
    v_mov_b32 v10, {fl(1/64)}
    s_cmp_eq_u32 s27, 1
    s_cselect_b32 s30, 1.0, 0
    v_fma_f32 v9, s30, v10, v9
    v_cvt_f32_u32 v10, v8
    v_mul_f32 v10, {fl(0.25)}, v10
    s_cselect_b32 s31, 0, {fl(-0.25)}
    v_add_f32 v11, s31, v10
    s_lshl_b32 s29, s28, 1
    s_add_u32 s29, s29, 8
    v_cmp_gt_u32 vcc, s29, v3
    v_cndmask_b32 v12, 0, 1.0, vcc
    s_cmp_eq_u32 s27, 1
    s_cselect_b32 s30, 0, 1.0
    v_mul_f32 v13, s30, v12
    s_sub_u32 s29, s26, s27
    s_cmp_eq_u32 s29, 1
    s_cselect_b32 s30, 0, 1.0
    v_mul_f32 v14, s30, v12
    v_lshlrev_b32 v15, 2, v4
    v_cvt_f32_u32 v15, v15""")
    BC = 16
    for ks in range(2):
        for i in range(8):
            t = 24 + i
            g(f"    v_add_f32 v{t}, {fl(16*ks + (i>>1))}, v15")
            g(f"    v_fma_f32 v{t}, v{t}, v9, v{10 if i % 2 == 0 else 11}")
        for i in range(8): g(f"    v_cos_f32 v{24+i}, v{24+i}")
        for i in range(8): g(f"    v_mul_f32 v{24+i}, v{24+i}, v{13 if i % 2 == 0 else 14}")
        for x in range(4): g(f"    v_cvt_pk_bf16_f32 v{BC+4*ks+x}, v{24+2*x}, v{25+2*x}")
    L = lab("lead")
    g(f"""    s_or_b32 s12, s15, s22
    s_cmp_eq_u32 s12, 0
    s_cbranch_scc0 {L}
    s_lshl_b32 s12, s14, 8
    s_add_u32 s12, s12, {MBL}
    v_lshlrev_b32 v123, 2, v3
    v_add_u32 v123, s12, v123""")
    poll(g, 123, 122, 124, FL, 16)
    g(f"""    v_and_b32 v123, 7, v2
    v_lshlrev_b32 v123, 8, v123
    s_lshl_b32 s12, s14, 2
    s_add_u32 s12, s12, {MBG}
    v_add_u32 v123, s12, v123
    s_mov_b64 exec, 0xff
    buffer_store_dword v122, v123, {FL}, 0 offen sc1
    s_mov_b64 exec, -1""")
    g(f"{L}:")
    g("""    v_and_b32 v32, 31, v2
    v_lshrrev_b32 v33, 5, v2
    v_cvt_f32_u32 v34, v32
    v_lshlrev_b32 v35, 2, v33
    v_cvt_f32_u32 v35, v35""")
    g(f"    v_mul_f32 v36, {fl(1/32)}, v34")
    g(f"    v_mul_f32 v37, {fl(1/1024)}, v34")
    CF, SF, NSF, NCF = 40, 48, 56, 64
    for ks in range(2):
        for i in range(8):
            d = (i & 3) + 8 * (2 * ks + (i >> 2))
            g(f"    v_add_f32 v{24+i}, {fl(d)}, v35")
            g(f"    v_mul_f32 v{24+i}, v{24+i}, v36")
        for i in range(8): g(f"    v_sin_f32 v{72+i}, v{24+i}")
        for i in range(8): g(f"    v_cos_f32 v{24+i}, v{24+i}")
        for x in range(4):
            g(f"    v_cvt_pk_bf16_f32 v{CF+4*ks+x}, v{24+2*x}, v{25+2*x}")
            g(f"    v_cvt_pk_bf16_f32 v{SF+4*ks+x}, v{72+2*x}, v{73+2*x}")
    for x in range(8):
        g(f"    v_xor_b32 v{NSF+x}, 0x80008000, v{SF+x}")
        g(f"    v_xor_b32 v{NCF+x}, 0x80008000, v{CF+x}")
    TC, TS_ = 72, 88
    for rI in range(16):
        d = (rI & 3) + 8 * (rI >> 2)
        g(f"    v_add_f32 v{TC+rI}, {fl(d)}, v35")
        g(f"    v_mul_f32 v{TC+rI}, v{TC+rI}, v37")
    for rI in range(16): g(f"    v_sin_f32 v{TS_+rI}, v{TC+rI}")
    for rI in range(16): g(f"    v_cos_f32 v{TC+rI}, v{TC+rI}")
    g(f"""    v_min_u32 v24, 10, v3
    v_mul_u32_u24 v24, {FSTRIDE}, v24
    v_lshl_add_u32 v24, v4, 3, v24
    s_lshl_b32 s29, s22, 9
    s_add_u32 s29, s29, {BREG}
    v_add_u32 v24, s29, v24
    s_and_b32 s12, s2, 7
    s_lshl_b32 s12, s12, 8
    s_add_u32 s12, s12, {MBG}
    v_lshlrev_b32 v123, 2, v3
    v_add_u32 v123, s12, v123""")
    g.ts(4)
    if NOB2:
        g.ts_flush(); g("    s_endpgm")
    g("    s_cmp_eq_u32 s22, 0")
    wave_poll_or_spin(g, None, 123, 122, 124, FL, 16, SY_MG)
    g.ts(5)
    GF = 128
    for t in range(16):
        g(f"    buffer_load_dwordx4 {vr(GF+8*t,4)}, v5, {G1}, 0 offen offset:{256*t}{SC}")
        g(f"    buffer_load_dwordx4 {vr(GF+8*t+4,4)}, v6, {G1}, 0 offen offset:{256*t}{SC}")
    for t in range(16):
        d = 104 + 4 * (t % 4)
        g(f"    s_waitcnt vmcnt({30 - 2*t})")
        g(f"    v_mfma_f32_16x16x32_bf16 {vr(d,4)}, {vr(GF+8*t,4)}, {vr(BC,4)}, 0")
        g(f"    v_mfma_f32_16x16x32_bf16 {vr(d,4)}, {vr(GF+8*t+4,4)}, {vr(BC+4,4)}, {vr(d,4)}")
        if t >= 2:
            tp = t - 2; dp = 104 + 4 * (tp % 4); pk = 120 if tp % 2 == 0 else 126
            g(f"    v_cvt_pk_bf16_f32 v{pk}, v{dp}, v{dp+1}")
            g(f"    v_cvt_pk_bf16_f32 v{pk+1}, v{dp+2}, v{dp+3}")
            g(f"    ds_write_b64 v24, {vr(pk,2)} offset:{32*tp}")
    for tp in (14, 15):
        dp = 104 + 4 * (tp % 4); pk = 120 if tp % 2 == 0 else 126
        g(f"    v_cvt_pk_bf16_f32 v{pk}, v{dp}, v{dp+1}")
        g(f"    v_cvt_pk_bf16_f32 v{pk+1}, v{dp+2}, v{dp+3}")
        g(f"    ds_write_b64 v24, {vr(pk,2)} offset:{32*tp}")
    lds_arrive(g, SY_B2, 30)
    g(f"""    v_bfe_u32 v25, v2, 2, 2
    v_and_b32 v26, 3, v2
    v_bfe_u32 v27, v2, 4, 1
    v_lshl_add_u32 v25, v33, 2, v25
    v_lshlrev_b32 v25, 6, v25
    v_lshl_add_u32 v25, v27, 5, v25
    v_lshl_add_u32 v25, v26, 3, v25
    s_mul_i32 s29, s22, {2*FSTRIDE}
    s_add_u32 s29, s29, {BREG}
    v_add_u32 v25, s29, v25
    s_add_u32 s30, s25, s22
    s_lshl_b32 s30, s30, 6
    s_cmp_eq_u32 s27, 1
    s_cselect_b32 s31, 32, s20
    s_add_u32 s30, s30, s31
    s_sub_u32 s31, 2048, s30
    s_cmp_eq_u32 s30, 0
    s_cselect_b32 s31, 1024, s31
    s_cselect_b32 s29, 1, 0
    v_lshlrev_b32 v28, 6, v32
    v_lshl_add_u32 v28, v33, 4, v28
    v_add_u32 v28, 2048, v28
    s_lshl_b32 s30, s30, 12
    s_lshl_b32 s31, s31, 12
    v_add_u32 v29, s30, v28
    v_add_u32 v38, s31, v28""")
    lds_wait(g, SY_B2, 30, 4, 12)
    g.ts(6)
    FR, FI = 104, 112
    def load_data(addr):
        for p, base in ((0, FR), (1, FI)):
            for ks in range(2):
                for j in range(2):
                    g(f"    ds_read_b64_tr_b16 {vr(base+4*ks+2*j,2)}, v{addr} offset:{p*FSTRIDE + 512*(2*ks+j)}")
    P, Qr, DR, DI, HR, HI, Y, PK = 128, 144, 160, 176, 192, 200, 208, 224
    def pq():
        g(f"    v_mfma_f32_32x32x16_bf16 {vr(P,16)}, {vr(FR,4)}, {vr(CF,4)}, 0")
        g(f"    v_mfma_f32_32x32x16_bf16 {vr(Qr,16)}, {vr(FR,4)}, {vr(NSF,4)}, 0")
        g(f"    v_mfma_f32_32x32x16_bf16 {vr(P,16)}, {vr(FR+4,4)}, {vr(CF+4,4)}, {vr(P,16)}")
        g(f"    v_mfma_f32_32x32x16_bf16 {vr(Qr,16)}, {vr(FR+4,4)}, {vr(NSF+4,4)}, {vr(Qr,16)}")
    def vrow(sg, rowaddr):
        s_, c_ = (SF, CF) if sg > 0 else (NSF, NCF)
        g(f"    v_mfma_f32_32x32x16_bf16 {vr(DR,16)}, {vr(FI,4)}, {vr(s_,4)}, {vr(P,16)}")
        g(f"    v_mfma_f32_32x32x16_bf16 {vr(DI,16)}, {vr(FI,4)}, {vr(c_,4)}, {vr(Qr,16)}")
        g(f"    v_mfma_f32_32x32x16_bf16 {vr(DR,16)}, {vr(FI+4,4)}, {vr(s_+4,4)}, {vr(DR,16)}")
        g(f"    v_mfma_f32_32x32x16_bf16 {vr(DI,16)}, {vr(FI+4,4)}, {vr(c_+4,4)}, {vr(DI,16)}")
        T1, T2 = 208, 224
        for rI in range(16):
            g(f"    v_mul_f32 v{T1+rI}, v{DR+rI}, v{TC+rI}")
            g(f"    v_mul_f32 v{T2+rI}, v{DI+rI}, v{TC+rI}")
        for rI in range(16):
            g(f"    v_fmac_f32 v{T1+rI}, v{DI+rI}, v{TS_+rI}")
            g(f"    v_fma_f32 v{T2+rI}, -v{DR+rI}, v{TS_+rI}, v{T2+rI}")
        for x in range(8):
            g(f"    v_cvt_pk_bf16_f32 v{HR+x}, v{T1+2*x}, v{T1+2*x+1}")
            g(f"    v_cvt_pk_bf16_f32 v{HI+x}, v{T2+2*x}, v{T2+2*x+1}")
        g(f"    v_mfma_f32_32x32x16_bf16 {vr(Y,16)}, {vr(HR,4)}, {vr(CF,4)}, 0")
        g(f"    v_mfma_f32_32x32x16_bf16 {vr(Y,16)}, {vr(HR+4,4)}, {vr(CF+4,4)}, {vr(Y,16)}")
        g(f"    v_mfma_f32_32x32x16_bf16 {vr(Y,16)}, {vr(HI,4)}, {vr(SF,4)}, {vr(Y,16)}")
        g(f"    v_mfma_f32_32x32x16_bf16 {vr(Y,16)}, {vr(HI+4,4)}, {vr(SF+4,4)}, {vr(Y,16)}")
        for x in range(8):
            g(f"    v_cvt_pk_bf16_f32 v{PK+x}, v{Y+2*x}, v{Y+2*x+1}")
        for b in (0, 4):
            g(f"    v_permlane32_swap_b32 v{PK+b}, v{PK+b+2}")
            g(f"    v_permlane32_swap_b32 v{PK+b+1}, v{PK+b+3}")
        g(f"    buffer_store_dwordx4 {vr(PK,4)}, v{rowaddr}, {OUT}, 0 offen{OUTB}")
        g(f"    buffer_store_dwordx4 {vr(PK+4,4)}, v{rowaddr}, {OUT}, 0 offen offset:32{OUTB}")
    load_data(25)
    g("    s_waitcnt lgkmcnt(0)")
    pq()
    vrow(+1, 29)
    g(f"""    s_cmp_eq_u32 s29, 1
    s_cbranch_scc0 b2_norm
    v_add_u32 v25, {8*FSTRIDE}, v25""")
    load_data(25)
    g("    s_waitcnt lgkmcnt(0)")
    pq()
    g("    s_nop 7\n    s_nop 7")
    g.label("b2_norm")
    vrow(-1, 38)
    g.ts(7)
    g.ts_flush()
    g("    s_endpgm")

def build():
    e = G()
    g = e
    g("""    s_cmp_ge_u32 s2, 256
    s_cbranch_scc1 main_exit
    s_load_dwordx16 s[52:67], s[0:1], 0
    s_load_dwordx4 s[68:71], s[0:1], 88
    s_load_dwordx2 s[72:73], s[0:1], 104""")
    if TS:
        g("    s_memrealtime s[84:85]")
    g(f"""    s_cmp_ge_u32 s2, {PFN}
    s_cbranch_scc1 pf_skip
    s_getpc_b64 s[74:75]
pf_pc:
    s_sub_u32 s74, s74, pf_pc-main_kernel
    s_subb_u32 s75, s75, 0
    v_lshlrev_b32 v240, 4, v0""")
    for i in range((CODE_KB + 7) // 8):
        if i: g(f"    v_add_u32 v240, 8192, v240")
        g(f"    v_min_u32 v241, text_end-main_kernel-16, v240")
        g(f"    global_load_dwordx4 v[244:247], v241, s[74:75]")
    g("""pf_skip:
    v_lshrrev_b32 v1, 6, v0
    v_and_b32 v0, 255, v0
    s_nop 0
    v_readfirstlane_b32 s3, v1
    s_cmp_ge_u32 s3, 4
    s_cbranch_scc1 role_b""")
    ae = G(); a_early(ae)
    am = G(); a_main(am)
    be = G(); b_early(be); b_main(be)
    for nm, path in (("A", e.l + ae.l + am.l), ("B", e.l + be.l)):
        pl, _ = asmlint.pad(path)
        errs = [x for x in asmlint.check_waits(pl, nm) if "v[244:247]" not in x]
        for x in errs[:30]: print("WAITERR", x)
    return e.l + ae.l + ["    s_branch role_a_main", "role_b:"] + be.l + ["role_a_main:"] + am.l + ["main_exit:", "    s_endpgm"]

def emit(path):
    lines = build()
    lines2, npad = asmlint.pad(lines)
    print("auto pads:", npad, "lines:", len(lines2))
    out = [HEADER.rstrip("\n")]
    out.append(f"; @launch grid=(256,1,1) block=(512,1,1) lds={LDS_TOTAL}")
    out.append('.amdgcn_target "amdgcn-amd-amdhsa--gfx950"')
    out.append(".text")
    n = NAME + "_kernel"
    out.append(f".globl {n}\n.p2align 8\n.type {n},@function\n{n}:\nmain_kernel:")
    out += lines2
    out.append("text_end:")
    out.append('.section .rodata,"a"')
    out.append(".p2align 6")
    out.append(f".amdhsa_kernel {n}")
    out.append("  .amdhsa_next_free_vgpr 256\n  .amdhsa_next_free_sgpr 102\n  .amdhsa_accum_offset 256\n  .amdhsa_group_segment_fixed_size 0\n  .amdhsa_kernarg_size 112\n  .amdhsa_user_sgpr_count 2\n  .amdhsa_user_sgpr_kernarg_segment_ptr 1\n  .amdhsa_system_sgpr_workgroup_id_x 1\n  .amdhsa_float_denorm_mode_32 3\n.end_amdhsa_kernel")
    open(path, "w").write("\n".join(out) + "\n")

if __name__ == "__main__":
    emit(sys.argv[1])
```
